```python
import torch

def _softmax(x, axis=-1):
    return torch.softmax(x, dim=axis)
def _gelu(x):
    return torch.nn.functional.gelu(x, approximate="tanh")
def _silu(x):
    return torch.nn.functional.silu(x)
def _sigmoid(x):
    return torch.sigmoid(x)
def _layernorm(x, axis=-1, eps=1e-5):
    m = x.mean(dim=axis, keepdim=True)
    v = x.var(dim=axis, keepdim=True, unbiased=False)
    return (x - m) / torch.sqrt(v + eps)
def _scatter_add(tgt, idx, src, axis=0):
    return tgt.clone().index_add_(axis, idx, src)
def _segment_sum(src, seg, n):
    out = torch.zeros((n,) + src.shape[1:], dtype=src.dtype)
    return out.index_add_(0, seg, src)
def _pad(x, pw):
    flat = tuple(v for pair in reversed(pw) for v in pair)
    return torch.nn.functional.pad(x, flat)

kernel_name = 'concat_heads__ssm_conv_s5__ssm_conv_s4__prompt'

def setup_inputs():

    _w = (lambda a: (lambda t: t.to(torch.bfloat16) if t.is_floating_point() else t)(torch.as_tensor(a)))
    def _A_setup():
        B, S, D = 1, 2048, 512
        P = D
        Lambda_re = -0.5 * (lambda _x: torch.exp(torch.as_tensor(_x)))((lambda *s: torch.randn(*s, dtype=torch.bfloat16) * 0.2)(P))
        Lambda_im = (lambda *s: torch.randn(*s, dtype=torch.bfloat16) * 0.4)(P) * 1.0
        B_re = (lambda *s: torch.randn(*s, dtype=torch.bfloat16) * 0.2)(P, D) * (D ** -0.5)
        B_im = (lambda *s: torch.randn(*s, dtype=torch.bfloat16) * 0.2)(P, D) * (D ** -0.5)
        C_re = (lambda *s: torch.randn(*s, dtype=torch.bfloat16) * 0.2)(D, P) * (P ** -0.5)
        C_im = (lambda *s: torch.randn(*s, dtype=torch.bfloat16) * 0.2)(D, P) * (P ** -0.5)
        log_dt = (lambda *s: torch.randn(*s, dtype=torch.bfloat16) * 0.2)(P) * 0.3 - 2.0
        Dskip = (lambda *s: torch.randn(*s, dtype=torch.bfloat16) * 0.05)(D)
        return {
            "x": _w((lambda *s: torch.randn(*s, dtype=torch.bfloat16) * 0.05)(B, S, D)),
            "Lambda_re": _w(Lambda_re),
            "Lambda_im": _w(Lambda_im),
            "B_re": _w(B_re),
            "B_im": _w(B_im),
            "C_re": _w(C_re),
            "C_im": _w(C_im),
            "log_dt": _w(log_dt),
            "Dskip": _w(Dskip),
        }
    _A_in = _A_setup()

    def _B_setup():
        B, L, D, N = 1, 2048, 512, 128
        A_re = -(lambda _x: torch.exp(torch.as_tensor(_x)))((lambda *s: torch.randn(*s, dtype=torch.bfloat16) * 3.2)(D, N))
        A_im = torch.pi * (lambda *s: torch.randn(*s, dtype=torch.bfloat16) * 0.05)(D, N)
        B_re = (lambda *s: torch.randn(*s, dtype=torch.bfloat16) * 0.1)(D, N)
        B_im = (lambda *s: torch.randn(*s, dtype=torch.bfloat16) * 0.1)(D, N)
        C_re = (lambda *s: torch.randn(*s, dtype=torch.bfloat16) * 0.1)(D, N)
        C_im = (lambda *s: torch.randn(*s, dtype=torch.bfloat16) * 0.1)(D, N)
        log_dt = (lambda *s: torch.randn(*s, dtype=torch.bfloat16) * 0.05)(D) * 0.5 - 4.0
        Dskip = (lambda *s: torch.randn(*s, dtype=torch.bfloat16) * 0.05)(D)
        return {
            "u": _w((lambda *s: torch.randn(*s, dtype=torch.bfloat16) * 0.05)(B, L, D)),
            "A_re": _w(A_re),
            "A_im": _w(A_im),
            "B_re": _w(B_re),
            "B_im": _w(B_im),
            "C_re": _w(C_re),
            "C_im": _w(C_im),
            "log_dt": _w(log_dt),
            "Dskip": _w(Dskip),
        }
    _B_in = _B_setup()

    return {
        "A_x": _A_in["x"],
        "A_Lambda_re": _A_in["Lambda_re"],
        "A_Lambda_im": _A_in["Lambda_im"],
        "A_B_re": _A_in["B_re"],
        "A_B_im": _A_in["B_im"],
        "A_C_re": _A_in["C_re"],
        "A_C_im": _A_in["C_im"],
        "A_log_dt": _A_in["log_dt"],
        "A_Dskip": _A_in["Dskip"],
        "B_u": _B_in["u"],
        "B_A_re": _B_in["A_re"],
        "B_A_im": _B_in["A_im"],
        "B_B_re": _B_in["B_re"],
        "B_B_im": _B_in["B_im"],
        "B_C_re": _B_in["C_re"],
        "B_C_im": _B_in["C_im"],
        "B_log_dt": _B_in["log_dt"],
        "B_Dskip": _B_in["Dskip"],
    }

def reference(A_x, A_Lambda_re, A_Lambda_im, A_B_re, A_B_im, A_C_re, A_C_im, A_log_dt, A_Dskip, B_u, B_A_re, B_A_im, B_B_re, B_B_im, B_C_re, B_C_im, B_log_dt, B_Dskip):
    def _A_ref(x, Lambda_re, Lambda_im, B_re, B_im, C_re, C_im, log_dt, Dskip):
        Bsz, L, H = x.shape
        Lam = Lambda_re + 1j * Lambda_im
        Bmat = B_re + 1j * B_im
        Cmat = C_re + 1j * C_im
        dt = torch.exp(log_dt)
        Lam_bar = torch.exp(dt * Lam)
        B_bar = ((Lam_bar - 1.0) / Lam)[:, None] * Bmat
        Bu = torch.einsum("bld,pd->blp", x + 0j, B_bar)
        h = torch.zeros_like(Bu[:, 0, :])
        hs = []
        for t in range(L):
            h = Lam_bar[None, :] * h + Bu[:, t, :]
            hs.append(h)
        hseq = torch.stack(hs, 1)
        y = 2.0 * torch.einsum("blp,dp->bld", hseq, Cmat).real + x * Dskip[None, None, :]
        return y

    def _B_ref(u, A_re, A_im, B_re, B_im, C_re, C_im, log_dt, Dskip):
        Bsz, L, D = u.shape
        dt = torch.exp(log_dt)[:, None]
        A = A_re + 1j * A_im
        Bc = B_re + 1j * B_im
        Cc = C_re + 1j * C_im
        logdA = dt * A
        dB = dt * Bc
        l = (lambda x, dt: x.to(dt))(torch.arange(L), A_re.dtype)
        P = torch.exp(logdA[:, :, None] * l[None, None, :])
        K = torch.einsum("dn,dnl,dn->dl", Cc, P, dB).real
        L2 = 2 * L
        Kp = _pad(K, ((0, 0), (0, L)))
        up = (lambda x, *d: x.permute(*d))(u, 0, 2, 1)
        up = _pad(up, ((0, 0), (0, 0), (0, L)))
        Kf = (lambda x, axes=(-2,-1): torch.fft.rfft2(x.float(), dim=axes))(Kp[:, None, :], axes=(-2, -1))
        Uf = (lambda x, axes=(-2,-1): torch.fft.rfft2(x.float(), dim=axes))(up[:, :, None, :], axes=(-2, -1))
        Yf = Uf * Kf[None, :, :, :]
        y = (lambda x, s, axes=(-2,-1): torch.fft.irfft2(x, s=s, dim=axes).to(torch.bfloat16))(Yf, (1, L2), axes=(-2, -1))[:, :, 0, :L]
        y = (lambda x, *d: x.permute(*d))(y, 0, 2, 1) + u * Dskip[None, None, :]
        return y

    a = _A_ref(A_x, A_Lambda_re, A_Lambda_im, A_B_re, A_B_im, A_C_re, A_C_im, A_log_dt, A_Dskip)
    b = _B_ref(B_u, B_A_re, B_A_im, B_B_re, B_B_im, B_C_re, B_C_im, B_log_dt, B_Dskip)
    return torch.concatenate([a, b], axis=-1)
```

```python
import re
TRANS = ("v_exp_f32", "v_log_f32", "v_rcp_f32", "v_rsq_f32", "v_sqrt_f32", "v_sin_f32", "v_cos_f32")
_tok = re.compile(r"(?<![\w.])(-?)(?:abs\()?([vsa])(?:(\d+)|\[(\d+):(\d+)\])|\b(vcc|exec|m0|scc)\b")

def regs_of(opnd):
    out = []
    for m in _tok.finditer(opnd):
        if m.group(6):
            out.append((m.group(6), 0))
        else:
            k = m.group(2)
            if m.group(3) is not None:
                out.append((k, int(m.group(3))))
            else:
                out += [(k, i) for i in range(int(m.group(4)), int(m.group(5)) + 1)]
    return out

def split_ops(s):
    ops, depth, cur = [], 0, ""
    for ch in s:
        if ch == "[": depth += 1
        if ch == "]": depth -= 1
        if ch == "," and depth == 0:
            ops.append(cur.strip()); cur = ""
        else:
            cur += ch
    if cur.strip(): ops.append(cur.strip())
    return ops

class Ins:
    pass

class Emitter:
    def __init__(self):
        self.lines = []
        self.hist = []
        self.pos = 0
        self.maxv = 0
        self.maxs = 0
        self.nnop = 0
    def raw(self, s):
        self.lines.append(s)
    def comment(self, s):
        self.lines.append("; " + s)
    def label(self, l):
        self.lines.append(l + ":")
    def nop(self, n):
        while n > 0:
            k = min(n, 16)
            self.lines.append(f"s_nop {k-1}")
            self.pos += k; n -= k; self.nnop += 1
    def __call__(self, text):
        for line in text.strip().split("\n"):
            line = line.split(";")[0].strip()
            if not line: continue
            if line.endswith(":"):
                self.label(line[:-1]); continue
            self.ins(line)
    def ins(self, line):
        parts = line.split(None, 1)
        mn = parts[0]
        rest = parts[1] if len(parts) > 1 else ""
        ops = split_ops(rest)
        assert not (mn.startswith("v_pk_") and "op_sel:[0,1" in rest), "unsafe pk op_sel: " + line
        I = Ins(); I.mn = mn; I.dst = []; I.src = []; I.srcC = []; I.kind = "other"
        I.dpp = ("_dpp" in mn) or ("quad_perm" in rest) or ("row_" in rest and "row_mask" in rest)
        allr = [regs_of(o.split(" ")[0]) if i < len(ops) - 1 or True else [] for i, o in enumerate(ops)]
        if mn.startswith("v_mfma"):
            I.kind = "mfma"; I.dst = allr[0]; I.src = allr[1] + allr[2]; I.srcC = allr[3]
            I.passes = 8 if "32x32" in mn else 4
        elif mn.startswith("v_"):
            I.kind = "valu"
            I.dst = allr[0]; I.src = [r for a in allr[1:] for r in a]
            if mn.startswith("v_permlane") and "swap" in mn:
                I.dst = allr[0] + allr[1]; I.src = allr[0] + allr[1]; I.kind = "valu"; I.perm = True
            if mn.startswith(("v_fmac", "v_pk_fmac")): I.src += allr[0]
            if mn.startswith(("v_add_co", "v_sub_co", "v_addc_co", "v_subb_co", "v_mad_u64")): I.dst = allr[0] + allr[1]; I.src = [r for a in allr[2:] for r in a]
            if mn.startswith("v_cndmask") and len(ops) == 3: I.src.append(("vcc", 0))
            if I.dpp: I.src += allr[0]
        elif mn.startswith("ds_"):
            I.kind = "ds"
            if mn.startswith("ds_read") or "_rtn" in mn or "permute" in mn or "swizzle" in mn:
                I.dst = allr[0]; I.src = [r for a in allr[1:] for r in a]
            else:
                I.src = [r for a in allr for r in a]
        elif mn.startswith(("buffer_", "global_")):
            I.kind = "vmem"
            islds = re.search(r"\blds\b", rest) is not None or "_lds_" in mn
            I.islds = islds
            if "load" in mn and not islds:
                I.dst = allr[0]; I.src = [r for a in allr[1:] for r in a]
            else:
                I.src = [r for a in allr for r in a]
                if "store" in mn and ("x4" in mn or "x3" in mn):
                    I.widestore = allr[0] if mn.startswith("buffer_") else allr[1]
            if islds: I.src.append(("m0", 0))
        elif mn.startswith("s_"):
            I.kind = "salu"
            if mn.startswith(("s_cmp", "s_cbranch", "s_branch", "s_waitcnt", "s_barrier", "s_nop", "s_sleep", "s_setprio", "s_endpgm", "s_bitcmp")):
                I.src = [r for a in allr for r in a]
            else:
                I.dst = allr[0] if allr else []; I.src = [r for a in allr[1:] for r in a]
                if "saveexec" in mn: I.dst = I.dst + [("exec", 0)]
            if mn.startswith(("s_load", "s_memtime", "s_memrealtime")): I.kind = "smem"
        for k, n in I.dst + I.src + I.srcC:
            if k == "v": self.maxv = max(self.maxv, n)
            if k == "s": self.maxs = max(self.maxs, n)
        need = 0
        S = set(I.src); D = set(I.dst); C = set(I.srcC)
        for P in self.hist[-24:]:
            dist = self.pos - P.pos - 1
            PD = set(P.dst)
            req = 0
            if P.kind == "valu":
                pv = {r for r in PD if r[0] == "v"}
                ps = {r for r in PD if r[0] in ("s", "vcc")}
                if I.kind == "mfma" and pv & (S | C): req = max(req, 2)
                if I.kind == "valu":
                    if P.mn in TRANS and pv & S and I.mn not in TRANS: req = max(req, 1)
                    if P.mn in TRANS and pv & S: req = max(req, 1)
                    if I.dpp and pv & S: req = max(req, 2)
                    if getattr(I, "perm", False) and pv & S: req = max(req, 2)
                    if I.mn.startswith(("v_readlane", "v_readfirstlane")) and pv & S: req = max(req, 1)
                    if ps & S: req = max(req, 4 if I.mn.startswith(("v_readlane", "v_writelane")) else 2)
                if I.kind == "vmem" and ps & S: req = max(req, 5)
                if I.kind in ("ds", "vmem") and P.mn in TRANS and pv & S: req = max(req, 1)
                if I.kind == "salu" and ps & S: req = max(req, 1)
            if P.kind == "mfma":
                n_rw = 8 if P.passes == 4 else 12
                n_ov = 6 if P.passes == 4 else 10
                n_war = 3 if P.passes == 4 else 7
                if I.kind == "mfma":
                    if PD & S: req = max(req, n_rw)
                    if PD & C and not (list(P.dst) == list(I.srcC)): req = max(req, n_ov)
                    if PD & D and not (list(P.dst) == list(I.srcC)): req = max(req, n_ov)
                elif I.kind in ("valu", "ds", "vmem"):
                    if PD & (S | D): req = max(req, n_rw)
                    if I.kind == "valu" and set(P.srcC) & D: req = max(req, n_war)
            if P.kind == "salu" and ("m0", 0) in PD and ("m0", 0) in S and I.kind == "vmem": req = max(req, 1)
            if getattr(P, "widestore", None) and set(P.widestore) & D: req = max(req, 2)
            if req > dist: need = max(need, req - dist)
        if need: self.nop(need)
        if mn == "s_nop":
            self.lines.append(line); self.pos += int(rest) + 1; return
        I.pos = self.pos
        self.pos += 1
        self.hist.append(I)
        self.lines.append(line)
    def text(self):
        return "\n".join(self.lines) + "\n"
```

```python
import sys, struct, os
from emit import Emitter

NAME = "concat_heads__ssm_conv_s5__ssm_conv_s4__prompt"
def f32(x): return "0x%08x" % struct.unpack("<I", struct.pack("<f", x))[0]
L2E = 1.4426950408889634
L2E_HI = struct.unpack("<f", struct.pack("<f", L2E))[0]
L2E_LO = L2E - L2E_HI
LN2 = 0.6931471805599453
INV2PI = 0.15915494309189535

WS_AGG = 0; WS_FH = 65536; WS_FU = 81920; WS_FY = 86016; WS_SYNC_END = 98304
WS_H = 0x100000; WS_UT = 0x500000; WS_YT = 0x700000; WS_ST = 0x900000
L_SEG = 131072; L_CAR = 135168; L_CNT = 135424
L_K = 135488; KSTR = 4176; L_U = 152192; USTR = 4608; L_SUM4 = 161408; LDS_TOTAL = 162432
NCLEAN = 16
C_YT, C_A, C_C, C_B1, C_P1, C_P2, C_CONV, C_CAR, C_H, C_UT = 0, 1, 2, 3, 4, 6, 8, 9, 10, 11
OPT = dict(x.split("=") for x in os.environ.get("OPT", "").split(",") if x)
def opt(k, d): return type(d)(OPT.get(k, d))

class G:
    def __init__(self, sync, stamps):
        self.e = Emitter(); self.sync = sync; self.stamps = stamps
        self.nst = 0; self.lbl = 0; self.vm = []; self.lg = []
    def __call__(self, t): self.e(t)
    def newl(self, p):
        self.lbl += 1; return f"L_{p}_{self.lbl}"
    def stamp(self):
        if self.stamps:
            self(f"s_memrealtime s[{84+2*self.nst}:{85+2*self.nst}]"); self.nst += 1
    def stamp_flush(self):
        if not self.stamps: return
        n = self.nst
        self("s_waitcnt lgkmcnt(0)")
        for k in range(12): self(f"v_mov_b32 v{8+k}, s{84+2*min(k, n-1)}")
        self(f"""s_lshl_b32 s76, s2, 3
s_add_u32 s76, s76, s3
s_mul_i32 s76, s76, 48
s_add_u32 s76, s76, {WS_ST}
v_mov_b32 v6, 0
s_mov_b64 exec, 1
buffer_store_dwordx4 v[8:11], v6, s[68:71], s76 offen
buffer_store_dwordx4 v[12:15], v6, s[68:71], s76 offen offset:16
buffer_store_dwordx4 v[16:19], v6, s[68:71], s76 offen offset:32""")
    def srd(self, d, b, n):
        self(f"""s_mov_b32 s{d}, s{b}
s_and_b32 s{d+1}, s{b+1}, 0xffff
s_mov_b32 s{d+2}, {n}
s_mov_b32 s{d+3}, 0x00020000""")
    def vmi(self, line, tag=None): self(line); self.vm.append(tag)
    def vmn(self, tag): return len(self.vm) - 1 - max(i for i, t in enumerate(self.vm) if t == tag)
    def vmwait(self, tag): self(f"s_waitcnt vmcnt({min(self.vmn(tag), 63)})")
    def lgi(self, line, tag=None): self(line); self.lg.append(tag)
    def lgwait(self, tag):
        idx = [i for i, t in enumerate(self.lg) if t == tag]
        if not idx: return
        n = len(self.lg) - 1 - max(idx)
        self(f"s_waitcnt lgkmcnt({min(n, 15)})")
        self.lg = self.lg[max(idx)+1:] if n <= 15 else self.lg[-15:]
    def lg0(self): self("s_waitcnt lgkmcnt(0)"); self.lg = []
    def lds_signal(self, k, base=4):
        self(f"s_mov_b64 exec, 1\nds_add_u32 v{base}, v5 offset:{4*k}\ns_mov_b64 exec, -1")
    def lds_wait(self, k, target, vt, base=4, sleep=0):
        l = self.newl("lw"); d = self.newl("lwd")
        if sleep:
            self(f"""{l}:
ds_read_b32 v{vt}, v{base} offset:{4*k}
s_waitcnt lgkmcnt(0)
v_readfirstlane_b32 s76, v{vt}
s_cmp_ge_u32 s76, {target}
s_cbranch_scc1 {d}
s_sleep {sleep}
s_branch {l}
{d}:""")
        else:
            self(f"""{l}:
ds_read_b32 v{vt}, v{base} offset:{4*k}
s_waitcnt lgkmcnt(0)
v_readfirstlane_b32 s76, v{vt}
s_cmp_ge_u32 s76, {target}
s_cbranch_scc0 {l}""")
        self.lg = []
    def clean_check(self, vt, vaddr):
        if not self.sync: return
        l = self.newl("cc"); d = self.newl("ccd")
        self(f"""s_mov_b32 s77, 0x40000
{l}:
global_load_dword v{vt}, v{vaddr}, s[46:47] offset:64 sc1
s_waitcnt vmcnt(0)
v_cmp_ne_u32 vcc, 1, v{vt}
s_cbranch_vccz {d}
s_sleep 4
s_sub_u32 s77, s77, 1
s_cmp_lg_u32 s77, 0
s_cbranch_scc1 {l}
{d}:""")
    def flag_poll(self, vt, vaddr, soff):
        if not self.sync: return
        l = self.newl("fp"); d = self.newl("fpd")
        self(f"""s_mov_b32 s77, 0x40000
{l}:
buffer_load_dword v{vt}, v{vaddr}, s[68:71], {soff} offen sc1
s_waitcnt vmcnt(0)
v_cmp_eq_u32 vcc, -1, v{vt}
s_cbranch_vccz {d}
s_sleep {opt('psleep', 4)}
s_sub_u32 s77, s77, 1
s_cmp_lg_u32 s77, 0
s_cbranch_scc1 {l}
{d}:""")
    def flag_set(self, vzero, soff):
        self("s_waitcnt vmcnt(0)")
        if not self.sync: return
        self(f"""s_mov_b64 exec, 1
buffer_store_dword v5, v{vzero}, s[68:71], {soff} offen sc1
s_mov_b64 exec, -1""")
    def cexp(self, er, ei, zr, zi, n, t0, t1):
        self(f"""v_mul_f32 v{t0}, {n}, v{zr}
v_mul_f32 v{t1}, {n}, v{zi}
v_exp_f32 v{t0}, v{t0}
v_fract_f32 v{t1}, v{t1}
v_cos_f32 v{er}, v{t1}
v_sin_f32 v{ei}, v{t1}
v_mul_f32 v{er}, v{t0}, v{er}
v_mul_f32 v{ei}, v{t0}, v{ei}""")
    def exp_bf16(self, d, x, t0, t1):
        self(f"""v_mul_f32 v{t0}, {f32(L2E_HI)}, v{x}
s_mov_b32 s33, {f32(L2E_HI)}
v_fma_f32 v{t1}, v{x}, s33, -v{t0}
v_fmac_f32 v{t1}, {f32(L2E_LO)}, v{x}
v_exp_f32 v{t0}, v{t0}
v_mul_f32 v{t1}, {f32(LN2)}, v{t1}
v_fma_f32 v{t0}, v{t0}, v{t1}, v{t0}
v_cvt_pk_bf16_f32 v{d}, v{t0}, v{t0}
v_lshlrev_b32 v{d}, 16, v{d}""")
    def cmul(self, dr, di, ar, ai, br, bi):
        self(f"""v_mul_f32 v{dr}, v{ar}, v{br}
v_mul_f32 v{di}, v{ar}, v{bi}
v_fma_f32 v{dr}, -v{ai}, v{bi}, v{dr}
v_fma_f32 v{di}, v{ai}, v{br}, v{di}""")
    def cmad(self, dr, di, ar, ai, br, bi, cr, ci):
        self(f"""v_fma_f32 v{dr}, v{ar}, v{br}, v{cr}
v_fma_f32 v{di}, v{ar}, v{bi}, v{ci}
v_fma_f32 v{dr}, -v{ai}, v{bi}, v{dr}
v_fma_f32 v{di}, v{ai}, v{br}, v{di}""")
    def pk(self, d, a, b, c, bsel, neg=False):
        n = " neg_lo:[1,0,0] neg_hi:[1,0,0]" if neg else ""
        self(f"v_pk_fma_f32 v[{d}:{d+1}], v[{b}:{b+1}], v[{a}:{a+1}], v[{c}:{c+1}] op_sel:[{bsel},0,0] op_sel_hi:[{bsel},1,1]{n}")
    def pkm(self, d, a, b, bsel):
        self(f"v_pk_mul_f32 v[{d}:{d+1}], v[{b}:{b+1}], v[{a}:{a+1}] op_sel:[{bsel},0] op_sel_hi:[{bsel},1]")
    def pmul(self, d, a, b):
        self(f"v_pk_mul_f32 v[{d}:{d+1}], v[{a}:{a+1}], v[{b}:{b+1}] op_sel:[0,0] op_sel_hi:[1,0]")
        self(f"v_pk_fma_f32 v[{d}:{d+1}], v[{a}:{a+1}], v[{b}:{b+1}], v[{d}:{d+1}] op_sel:[1,1,0] op_sel_hi:[0,1,1] neg_lo:[0,1,0]")
    def pmad2(self, dst, src, w2):
        for ee in range(2):
            self(f"v_pk_fma_f32 v[{dst+2*ee}:{dst+2*ee+1}], v[{src+2*ee}:{src+2*ee+1}], v[{w2[ee]}:{w2[ee]+1}], v[{dst+2*ee}:{dst+2*ee+1}] op_sel:[0,0,0] op_sel_hi:[1,0,1]")
        for ee in range(2):
            self(f"v_pk_fma_f32 v[{dst+2*ee}:{dst+2*ee+1}], v[{src+2*ee}:{src+2*ee+1}], v[{w2[ee]}:{w2[ee]+1}], v[{dst+2*ee}:{dst+2*ee+1}] op_sel:[1,1,0] op_sel_hi:[0,1,1] neg_lo:[0,1,0]")
    def gsum(self, r, t):
        for sw in ("v_permlane16_swap_b32", "v_permlane32_swap_b32"):
            for k in range(4): self(f"v_mov_b32 v{t+k}, v{r+k}")
            for k in range(4): self(f"{sw} v{t+k}, v{r+k}")
            for k in range(4): self(f"v_add_f32 v{r+k}, v{r+k}, v{t+k}")
    def capture(self, fn):
        real = self.e; lines = []
        class Cap:
            def __call__(s, t):
                for line in t.strip().split("\n"):
                    line = line.split(";")[0].strip()
                    if line: lines.append(line)
        self.e = Cap()
        try: fn()
        finally: self.e = real
        return lines
    def merge(self, main, side, every):
        side = list(side)
        for n, line in enumerate(main):
            if n % every == 0 and side: self("\n".join(side.pop(0)))
            self(line)
        for g_ in side: self("\n".join(g_))

def gen(sync=True, stamps=0, nlaunch=1, doA=True, doB=True):
    from gen2A import roleA
    from gen2B import roleB
    g = G(sync, stamps)
    K = NAME + "_kernel"; g.K = K
    out = open("cdna_kernels/" + NAME + ".s.ref").read().split("; Override launch")[0]
    if nlaunch == 1: out += f"; @launch grid=(256,1,1) block=(512,1,1) lds={LDS_TOTAL}\n"
    else: out += f"; @launch kernel={K} grid=(256,1,1) block=(512,1,1) lds={LDS_TOTAL}\n" * nlaunch
    out += f""".amdgcn_target "amdgcn-amd-amdhsa--gfx950"
.text
.globl {K}
.p2align 8
.type {K},@function
{K}:
"""
    g.stamp()
    g(f"""s_cmp_ge_u32 s2, 256
s_cbranch_scc1 L_end
s_load_dwordx16 s[24:39], s[0:1], 64
s_load_dwordx8 s[40:47], s[0:1], 128
s_load_dwordx2 s[48:49], s[0:1], 160
s_load_dwordx16 s[8:23], s[0:1], 0
v_and_b32 v0, 0x3ff, v0
v_and_b32 v1, 63, v0
v_lshrrev_b32 v6, 6, v0
v_and_b32 v2, 15, v0
v_readfirstlane_b32 s3, v6
v_bfe_u32 v3, v0, 4, 2
v_mov_b32 v4, {L_CNT}
v_mov_b32 v5, 1
s_and_b32 s4, s2, 7
s_lshr_b32 s5, s2, 3
s_cmp_ge_u32 s3, 4
s_cbranch_scc1 L_roleB""")
    n0 = g.nst
    if doA: roleA(g)
    else: g("v_mov_b32 v7, 0\nv_lshl_add_u32 v6, v2, 2, v4\nds_write_b32 v6, v7\ns_waitcnt lgkmcnt(0)\ns_barrier")
    g("s_endpgm\nL_roleB:")
    g.nst = n0; g.vm = []; g.lg = []
    if doB: roleB(g)
    g("L_end:\ns_endpgm")
    out += g.e.text()
    out += f".fill (33024 - (. - {K}))/4, 4, 0xbf800000\n"
    out += f""".section .rodata,"a"
.p2align 6
.amdhsa_kernel {K}
  .amdhsa_next_free_vgpr 256
  .amdhsa_next_free_sgpr 102
  .amdhsa_accum_offset 256
  .amdhsa_group_segment_fixed_size 0
  .amdhsa_kernarg_size 168
  .amdhsa_user_sgpr_count 2
  .amdhsa_user_sgpr_kernarg_segment_ptr 1
  .amdhsa_system_sgpr_workgroup_id_x 1
.end_amdhsa_kernel
"""
    return out

if __name__ == "__main__":
    import argparse
    ap = argparse.ArgumentParser()
    ap.add_argument("out")
    ap.add_argument("--nosync", action="store_true")
    ap.add_argument("--stamps", type=int, default=0)
    ap.add_argument("--nlaunch", type=int, default=1)
    ap.add_argument("--noA", action="store_true")
    ap.add_argument("--noB", action="store_true")
    a = ap.parse_args()
    open(a.out, "w").write(gen(not a.nosync, a.stamps, a.nlaunch, not a.noA, not a.noB))
```

```python
from gen2 import *
def roleA(g):
    e = g; sync = g.sync
    e(f"""s_setprio {opt('prioA', 2)}
v_mov_b32 v7, 0
v_lshl_add_u32 v6, v2, 2, v4
ds_write_b32 v6, v7
s_lshr_b32 s6, s4, 1
s_lshl_b32 s6, s6, 2
s_lshr_b32 s51, s5, 3
s_add_u32 s6, s6, s51
s_lshl_b32 s51, s51, 1
s_and_b32 s7, s4, 1
s_lshl_b32 s7, s7, 3
s_and_b32 s50, s5, 7
s_add_u32 s7, s7, s50
s_add_u32 s50, s50, s51
v_lshrrev_b32 v48, 3, v1
v_and_b32 v49, 7, v1
v_bfe_u32 v50, v1, 4, 1""")
    for b in range(4):
        e(f"""v_or_b32 v51, {b<<1}, v50
v_xor_b32 v51, v51, v49
v_lshlrev_b32 v51, 4, v51
v_lshl_add_u32 v{6+b}, v48, 10, v51
v_add_u32 v{6+b}, {b*(8192-1024)}, v{6+b}""")
    e("""v_and_b32 v50, 3, v48
v_lshlrev_b32 v50, 13, v50
v_lshrrev_b32 v48, 5, v1
v_lshl_add_u32 v48, v48, 11, v50""")
    for b2 in range(2):
        e(f"""v_or_b32 v51, {4*b2}, v3
v_xor_b32 v51, v51, v49
v_lshl_add_u32 v{10+b2}, v51, 4, v48
v_add_u32 v{10+b2}, {b2*(4096-1024)}, v{10+b2}""")
    e(f"""s_lshl_b32 s78, s6, 17
s_lshl_b32 s76, s3, 15
s_add_u32 s78, s78, s76
s_lshl_b32 s79, s7, 15
s_and_b32 s76, s3, 1
s_lshl_b32 s76, s76, 10
s_add_u32 s79, s79, s76
s_lshl_b32 s80, s3, 11
s_lshl_b32 s81, s3, 14
s_add_u32 s81, s81, 65536
s_lshl_b32 s76, s7, 6
v_and_b32 v52, 3, v2
v_lshlrev_b32 v52, 4, v52
v_and_b32 v51, 12, v2
v_add3_u32 v52, v52, v51, s76
s_lshl_b32 s82, s4, 2
s_and_b32 s76, s5, 3
s_add_u32 s82, s82, s76
s_lshr_b32 s83, s5, 2
v_lshrrev_b32 v48, 1, v2
v_xor_b32 v48, v48, v3
v_lshlrev_b32 v48, 4, v48
v_lshrrev_b32 v49, 2, v2
v_lshlrev_b32 v49, 3, v49
v_and_b32 v50, 3, v2
v_add_u32 v49, v49, v50
v_lshl_add_u32 v12, v49, 7, v48
v_add_u32 v12, s81, v12
v_xor_b32 v13, 64, v12
v_lshl_add_u32 v14, v2, 7, v48
v_xor_b32 v15, 64, v14
s_lshl_b32 s76, s3, 2
s_add_u32 s76, s76, {L_CNT+48}
v_mov_b32 v0, s76
s_waitcnt lgkmcnt(0)""")
    g.srd(52, 8, 2048*1024)
    e("""s_cmp_ge_u32 s3, 2
s_cselect_b32 s56, s16, s14
s_cselect_b32 s57, s17, s15
s_and_b32 s57, s57, 0xffff
s_mov_b32 s58, 0x80000
s_mov_b32 s59, 0x00020000""")
    g.vmi("global_load_dword v101, v52, s[10:11]")
    g.vmi("global_load_dword v102, v52, s[12:13]")
    g.vmi("global_load_dword v103, v52, s[22:23]", "par")
    e("s_barrier")
    def Bld(kk):
        e(f"""s_add_u32 s76, s50, {kk}
s_and_b32 s76, s76, 7
s_lshl_b32 s76, s76, 7
s_add_u32 m0, s80, {kk*8192}
s_add_u32 s76, s76, s79""")
        g.vmi("buffer_load_dwordx4 v10, s[56:59], s76 offen lds")
        g.vmi("buffer_load_dwordx4 v11, s[56:59], s76 offen offset:1024 lds", f"B{kk}")
    LAND = {4: 128, 5: 144, 6: 196, 7: 212}
    def Xld(kk):
        e(f"""s_add_u32 s76, s50, {kk}
s_and_b32 s76, s76, 7
s_lshl_b32 s76, s76, 7""" + (f"\ns_add_u32 m0, s81, {kk*4096}" if kk < 4 else "") + "\ns_add_u32 s76, s76, s78")
        for b in range(4):
            if kk < 4: g.vmi(f"buffer_load_dwordx4 v{6+b}, s[52:55], s76 offen offset:{b*1024} lds", f"X{kk}")
            else:
                r = LAND[kk] + 4*b
                g.vmi(f"buffer_load_dwordx4 v[{r}:{r+3}], v{6+b}, s[52:55], s76 offen offset:{b*1024}", f"X{kk}")
    Bld(0); Bld(1); Xld(0); Bld(2); Xld(1); Bld(3); Xld(2)
    e("v_lshl_add_u32 v125, v1, 4, s81")
    g.srd(68, 48, 0x1000000)
    g.srd(60, 18, 512*1024)
    g.srd(64, 20, 512*1024)
    lam = (160, 162); lam2 = (164, 166); lam8 = (168, 170); wA = (172, 174); cf = (176, 178)
    L4 = (180, 182); Lg = (184, 186); wS = (188, 190)
    PWr = lambda ee, i: 196 + 16*ee + i
    PWi = lambda ee, i: 204 + 16*ee + i
    ZR, ZI, LR, LI = (104, 105), (106, 107), (108, 109), (110, 111)
    T0, T1, T2, T3, NA, NS_, NC, DTV = 112, 113, 114, 115, 116, 117, 118, 119
    def consts():
        e(f"""v_lshlrev_b32 v{LR[0]}, 16, v101
v_and_b32 v{LR[1]}, 0xffff0000, v101
v_lshlrev_b32 v{LI[0]}, 16, v102
v_and_b32 v{LI[1]}, 0xffff0000, v102
v_lshlrev_b32 v{T2}, 16, v103
v_and_b32 v{T3}, 0xffff0000, v103
s_lshl_b32 s33, s3, 2
v_add_u32 v{NS_}, s33, v3
v_sub_u32 v{NA}, 15, v{NS_}
v_lshlrev_b32 v{NS_}, 3, v{NS_}
v_lshlrev_b32 v{NA}, 3, v{NA}
v_lshlrev_b32 v{NC}, 7, v3
v_cvt_f32_i32 v{NS_}, v{NS_}
v_cvt_f32_i32 v{NA}, v{NA}
v_cvt_f32_i32 v{NC}, v{NC}""")
        for ee in range(2):
            g.exp_bf16(DTV, (T2, T3)[ee], T0, T1)
            e(f"""v_mul_f32 v{ZR[ee]}, v{DTV}, v{LR[ee]}
v_mul_f32 v{ZI[ee]}, v{DTV}, v{LI[ee]}
v_mul_f32 v{ZR[ee]}, {f32(L2E)}, v{ZR[ee]}
v_mul_f32 v{ZI[ee]}, {f32(INV2PI)}, v{ZI[ee]}""")
        for ee in range(2):
            g.cexp(lam[ee], lam[ee]+1, ZR[ee], ZI[ee], "1.0", T0, T1)
            g.cexp(wA[ee], wA[ee]+1, ZR[ee], ZI[ee], f"v{NA}", T0, T1)
            g.cmul(lam2[ee], lam2[ee]+1, lam[ee], lam[ee]+1, lam[ee], lam[ee]+1)
    def consts2():
        for ee in range(2):
            g.cexp(lam8[ee], lam8[ee]+1, ZR[ee], ZI[ee], f32(8.0), T0, T1)
            g.cexp(wS[ee], wS[ee]+1, ZR[ee], ZI[ee], f"v{NS_}", T0, T1)
            g.cexp(L4[ee], L4[ee]+1, ZR[ee], ZI[ee], f32(512.0), T0, T1)
            g.cexp(Lg[ee], Lg[ee]+1, ZR[ee], ZI[ee], f"v{NC}", T0, T1)
            e(f"""v_add_f32 v{T0}, -1.0, v{lam[ee]}
v_mul_f32 v{T1}, v{LR[ee]}, v{LR[ee]}
v_fmac_f32 v{T1}, v{LI[ee]}, v{LI[ee]}
v_rcp_f32 v{T1}, v{T1}
v_mul_f32 v{cf[ee]}, v{T0}, v{LR[ee]}
v_fmac_f32 v{cf[ee]}, v{lam[ee]+1}, v{LI[ee]}
v_mul_f32 v{cf[ee]+1}, v{lam[ee]+1}, v{LR[ee]}
v_fma_f32 v{cf[ee]+1}, -v{T0}, v{LI[ee]}, v{cf[ee]+1}
v_add_f32 v{T1}, v{T1}, v{T1}
v_mul_f32 v{cf[ee]}, v{cf[ee]}, v{T1}
v_mul_f32 v{cf[ee]+1}, v{cf[ee]+1}, v{T1}""")
        e(f"""s_lshl_b32 s33, s3, 10
v_lshl_add_u32 v120, v1, 4, s33
v_add_u32 v120, {L_SEG}, v120
v_lshlrev_b32 v123, 4, v2
v_add_u32 v121, {L_SUM4}, v123
s_lshl_b32 s33, s3, 8
v_add_u32 v122, s33, v121""")
    def pwgen():
        for ee in range(2):
            g.cmul(94, 95, wS[ee], wS[ee]+1, cf[ee], cf[ee]+1)
            g.cmul(PWr(ee, 0), PWi(ee, 0), 94, 95, lam[ee], lam[ee]+1)
            g.cmul(PWr(ee, 1), PWi(ee, 1), 94, 95, lam2[ee], lam2[ee]+1)
            for k in range(1, 4):
                dr, di, sr, si, l2 = PWr(ee, 2*k), PWi(ee, 2*k), PWr(ee, 2*k-2), PWi(ee, 2*k-2), lam2[ee]
                g.pkm(dr, sr, l2, 0); g.pkm(di, sr, l2, 1)
                g.pk(dr, si, l2, dr, 1, neg=True); g.pk(di, si, l2, di, 0)
    ce = opt('cearly', 1)
    if ce >= 1:
        g.vmwait("par"); consts()
    if ce >= 2: consts2()
    cl = (g.capture(consts) if ce < 1 else []) + (g.capture(consts2) if ce < 2 else [])
    def extras():
        e("""s_bitcmp1_b32 s3, 0
s_cselect_b32 s76, s20, s18
s_cselect_b32 s77, s21, s19
s_lshl_b32 s75, s5, 14
v_lshl_add_u32 v231, v1, 7, s75
s_lshr_b32 s75, s3, 1
s_lshl_b32 s75, s75, 13
v_add_u32 v231, s75, v231""")
        g.vmi("global_load_dword v230, v231, s[76:77]")
    def extras2():
        e("""s_lshl_b32 s75, s82, 16
s_lshl_b32 s76, s3, 14
s_add_u32 s75, s75, s76
s_lshl_b32 s76, s83, 7
s_add_u32 s75, s75, s76
v_lshlrev_b32 v232, 3, v3
v_lshl_add_u32 v233, v2, 10, v232
v_add_u32 v232, s76, v232""")
        for mt in range(4):
            g.vmi(f"buffer_load_dwordx2 v[{240+2*mt}:{241+2*mt}], v233, s[52:55], s75 offen offset:{32*mt}")
            g.vmi(f"global_load_dwordx2 v[{248+2*mt}:{249+2*mt}], v232, s[24:25] offset:{32*mt}")
        e("v_lshlrev_b32 v228, 2, v2")
        if sync: g.vmi("global_load_dword v229, v228, s[46:47] offset:64 sc1", "clean")
    acc = lambda mt, nt: 16 + 16*mt + 4*nt
    fA = lambda n, mt: 48 + 24*(n % 2) + 4*mt
    fB = lambda n, nt: 56 + 24*(n % 2) + 4*nt
    def chunk_ready(kk, first=False):
        g.vmwait(f"X{kk}")
        if kk >= 4:
            for b in range(4):
                r = LAND[kk] + 4*b
                g.lgi(f"ds_write_b128 v125, v[{r}:{r+3}] offset:{(kk%4)*4096 + b*1024}")
        e(f"v_mov_b32 v100, {min(kk+2, 8)}")
        g.lgi("ds_write_b32 v0, v100")
        l = g.newl("pr"); d = g.newl("prd")
        chk = f"""v_min3_u32 v124, v96, v97, v98
v_min_u32 v124, v124, v99
s_nop 0
v_readfirstlane_b32 s76, v124
s_cmp_ge_u32 s76, {kk+1}"""
        if not first:
            g.lgwait("prog")
            e(chk + f"\ns_cbranch_scc1 {d}")
        e(f"{l}:\nds_read_b128 v[96:99], v4 offset:48\ns_waitcnt lgkmcnt(0)\n" + chk + f"\ns_cbranch_scc0 {l}\n{d}:")
    def reads(n):
        kk, ks = n // 2, n % 2
        rA = lambda mt: (f"ds_read_b128 v[{fA(n,mt)}:{fA(n,mt)+3}], v{12+ks} offset:{(kk%4)*4096 + mt*512}", f"A{mt}_{n}")
        rB = lambda nt: (f"ds_read_b128 v[{fB(n,nt)}:{fB(n,nt)+3}], v{14+ks} offset:{kk*8192 + nt*2048}", f"B{nt}_{n}")
        return [rA(0), rB(0), rA(1), rB(1), rB(2), rB(3)]
    chunk_ready(0, True)
    g.stamp()
    for r in reads(0): g.lgi(*r)
    for n in range(16):
        kk = n // 2
        if n % 2 == 1 and n < 15: chunk_ready(kk+1)
        nxt = reads(n+1) if n < 15 else []
        need = {0: f"B0_{n}", 1: f"A1_{n}", 2: f"B1_{n}", 4: f"B2_{n}", 6: f"B3_{n}"}
        for m in range(8):
            nt, mt = m // 2, m % 2
            if m in need: g.lgwait(need[m])
            a = acc(mt, nt)
            c = "0" if n == 0 else f"v[{a}:{a+3}]"
            e(f"v_mfma_f32_16x16x32_bf16 v[{a}:{a+3}], v[{fA(n,mt)}:{fA(n,mt)+3}], v[{fB(n,nt)}:{fB(n,nt)+3}], {c}")
            if nxt: g.lgi(*nxt.pop(0))
            elif m == 6 and n % 2 == 0 and kk < 7: g.lgi("ds_read_b128 v[96:99], v4 offset:48", "prog")
            for _ in range(2 if n >= 5 else 1):
                if cl: e(cl.pop(0))
            if n <= 4:
                if m == 1 and n + 4 < 8: Bld(n+4)
                if m == 4: Xld(n+3)
            if n == 6 and m == 7: extras2()
    for l_ in cl: e(l_)
    g.stamp()
    Pr = lambda ee, k: acc(k//2, ee) + 2*(k % 2)
    Pi = lambda ee, k: acc(k//2, 2+ee) + 2*(k % 2)
    cur = [(Pr(0, 0), Pi(0, 0)), (Pr(1, 0), Pi(1, 0))]
    for k in range(1, 4):
        nx = [(48 + 8*(k % 2) + 4*ee, 50 + 8*(k % 2) + 4*ee) for ee in range(2)]
        for ee in range(2):
            g.pk(nx[ee][0], cur[ee][0], lam2[ee], Pr(ee, k), 0)
            g.pk(nx[ee][1], cur[ee][0], lam2[ee], Pi(ee, k), 1)
        for ee in range(2):
            g.pk(nx[ee][0], cur[ee][1], lam2[ee], nx[ee][0], 1, neg=True)
            g.pk(nx[ee][1], cur[ee][1], lam2[ee], nx[ee][1], 0)
        cur = nx
    for ee in range(2):
        g.cmad(64+2*ee, 65+2*ee, cur[ee][0], cur[ee][1], lam[ee], lam[ee]+1, cur[ee][0]+1, cur[ee][1]+1)
    for ee in range(2): g.pmul(68+2*ee, 64+2*ee, wA[ee])
    e("ds_write_b128 v120, v[64:67]")
    g.gsum(68, 72)
    e(f"""s_mov_b64 exec, 0xffff
ds_write_b128 v122, v[68:71]
s_mov_b64 exec, 1
ds_add_rtn_u32 v90, v4, v5 offset:{4*C_A}
s_mov_b64 exec, -1
s_lshl_b32 s76, s7, 12
s_lshl_b32 s77, s6, 8
s_add_u32 s79, s76, s77""")
    if sync:
        g.vmwait("clean")
        e("v_cmp_ne_u32 vcc, 1, v229\ns_cbranch_vccz L_A_clean")
        g.clean_check(229, 228)
        e("L_A_clean:")
    e(f"""s_waitcnt lgkmcnt(0)
v_readfirstlane_b32 s76, v90
s_cmp_lg_u32 s76, 3
s_cbranch_scc1 L_A_nopub
ds_read_b128 v[68:71], v121
ds_read_b128 v[72:75], v121 offset:256
ds_read_b128 v[76:79], v121 offset:512
ds_read_b128 v[80:83], v121 offset:768
s_waitcnt lgkmcnt(0)
v_pk_add_f32 v[68:69], v[68:69], v[72:73]
v_pk_add_f32 v[70:71], v[70:71], v[74:75]
v_pk_add_f32 v[76:77], v[76:77], v[80:81]
v_pk_add_f32 v[78:79], v[78:79], v[82:83]
v_pk_add_f32 v[68:69], v[68:69], v[76:77]
v_pk_add_f32 v[70:71], v[70:71], v[78:79]
v_min_u32 v68, -2, v68
v_min_u32 v69, -2, v69
v_min_u32 v70, -2, v70
v_min_u32 v71, -2, v71
s_mov_b64 exec, 0xffff
buffer_store_dwordx4 v[68:71], v123, s[68:71], s79 offen sc1
s_mov_b64 exec, -1
L_A_nopub:""")
    g.stamp()
    e("v_mov_b32 v91, v123")
    HLr = lambda ee, i: 96 + 16*ee + i
    HLi = lambda ee, i: 104 + 16*ee + i
    for ee in range(2):
        for k in range(4):
            g.pkm(HLr(ee, 2*k), Pr(ee, k), cf[ee], 0); g.pkm(HLi(ee, 2*k), Pr(ee, k), cf[ee], 1)
            g.pk(HLr(ee, 2*k), Pi(ee, k), cf[ee], HLr(ee, 2*k), 1, neg=True)
            g.pk(HLi(ee, 2*k), Pi(ee, k), cf[ee], HLi(ee, 2*k), 0)
    pwgen()
    g.lds_wait(C_A, 4, 90)
    e(f"""s_bitcmp1_b32 s83, 0
s_cselect_b32 s76, s20, s18
s_cselect_b32 s77, s21, s19
s_cselect_b32 s64, s18, s20
s_cselect_b32 s65, s19, s21
s_mov_b32 s60, s76
s_and_b32 s61, s77, 0xffff
s_and_b32 s65, s65, 0xffff
v_lshlrev_b32 v92, 4, v1
s_lshr_b32 s75, s83, 1
s_lshl_b32 s75, s75, 8
s_lshl_b32 s78, s83, 16
s_mul_i32 s80, s3, 21
s_sub_u32 s80, s80, 21
v_add_u32 v88, {L_SEG}, v91
v_mov_b32 v64, 0
v_mov_b32 v65, 0
v_mov_b32 v66, 0
v_mov_b32 v67, 0""")
    cside = []
    for k in range(22):
        cside.append([f"s_add_u32 s72, s80, {k}", "s_and_b32 s73, s72, 15", "s_lshl_b32 s73, s73, 4", "v_xor_b32 v93, s73, v92",
                      "v_add_u32 v93, s75, v93", "v_and_b32 v93, 0x3ff, v93", "s_lshl_b32 s72, s72, 10", "s_mov_b32 m0, s72",
                      "s_add_u32 s74, s78, s72", "buffer_load_dwordx4 v93, s[60:63], s74 offen lds"])
        cside.append(["s_add_u32 m0, s72, 65536", "s_nop 0", "buffer_load_dwordx4 v93, s[64:67], s74 offen lds"])
    def tail():
        e("""ds_read_b128 v[68:71], v88
ds_read_b128 v[72:75], v88 offset:256
ds_read_b128 v[76:79], v88 offset:512
s_waitcnt lgkmcnt(0)""")
        g.pmad2(68, 64, lam8); g.pmad2(72, 68, lam8); g.pmad2(76, 72, lam8)
        for st in range(3):
            e(f"v_cmp_eq_u32 vcc, {st+1}, v3")
            for k in range(4): e(f"v_cndmask_b32 v{64+k}, v{64+k}, v{68+4*st+k}, vcc")
        for ee in range(2): g.pmul(68+2*ee, 64+2*ee, cf[ee])
        for i in range(8):
            for ee in range(2):
                pr, pi_ = (68+2*ee, 69+2*ee) if i == 0 else (HLr(ee, i-1), HLi(ee, i-1))
                g.cmad(HLr(ee, i), HLi(ee, i), pr, pi_, lam[ee], lam[ee]+1, HLr(ee, i), HLi(ee, i))
        e(f"""v_lshrrev_b32 v84, 1, v3
v_lshlrev_b32 v84, 15, v84
v_and_b32 v85, 3, v2
v_lshlrev_b32 v85, 3, v85
v_and_b32 v86, 1, v3
v_lshl_add_u32 v85, v86, 2, v85
v_lshrrev_b32 v86, 2, v2
v_add_u32 v85, v85, v86
v_lshl_add_u32 v84, v85, 4, v84
v_mov_b32 v87, 0
v_add_u32 v89, {L_CAR}, v91""")
    e("s_cmp_eq_u32 s3, 0\ns_cbranch_scc1 L_A_w0")
    for g_ in cside[:6]: e("\n".join(g_))
    e("""s_mov_b32 s77, s3
L_A_pf1:
ds_read_b128 v[68:71], v88
ds_read_b128 v[72:75], v88 offset:256
ds_read_b128 v[76:79], v88 offset:512
ds_read_b128 v[80:83], v88 offset:768
s_waitcnt lgkmcnt(0)
v_add_u32 v88, 1024, v88""")
    g.pmad2(68, 64, lam8); g.pmad2(72, 68, lam8); g.pmad2(76, 72, lam8); g.pmad2(80, 76, lam8)
    e("""v_mov_b32 v64, v80
v_mov_b32 v65, v81
v_mov_b32 v66, v82
v_mov_b32 v67, v83
s_sub_u32 s77, s77, 1
s_cmp_lg_u32 s77, 0
s_cbranch_scc1 L_A_pf1""")
    g.merge(g.capture(tail), cside[6:], 3)
    g.lds_wait(C_CAR, 1, 90, sleep=1)
    e("ds_read_b128 v[72:75], v89\ns_waitcnt lgkmcnt(0)\ns_branch L_A_fin")
    e("L_A_w0:")
    e("""s_sub_i32 s76, s6, 1
v_sub_u32 v144, s76, v3""")
    for qq in range(3, -1, -1):
        e(f"""v_add_u32 v{144+qq}, {-4*qq}, v144
v_max_i32 v{144+qq}, 0, v{144+qq}
v_lshl_add_u32 v{144+qq}, v{144+qq}, 8, v91""")
    tail()
    e("""v_mov_b32 v72, 0
v_mov_b32 v73, 0
v_mov_b32 v74, 0
v_mov_b32 v75, 0
s_cmp_eq_u32 s6, 0
s_cbranch_scc1 L_A_nocarry
s_lshl_b32 s78, s7, 12
s_mov_b32 s77, 0x40000
L_A_cp:""")
    for qq in range(4):
        e(f"buffer_load_dwordx4 v[{128+4*qq}:{131+4*qq}], v{144+qq}, s[68:71], s78 offen sc1")
    e("v_mov_b32 v95, 0")
    for qq in range(4):
        r = 128 + 4*qq
        e(f"""v_add_u32 v94, {4*qq}, v3
v_cmp_gt_u32 vcc, s6, v94
s_waitcnt vmcnt({3-qq})
v_cndmask_b32 v{r}, 0, v{r}, vcc
v_cndmask_b32 v{r+1}, 0, v{r+1}, vcc
v_cndmask_b32 v{r+2}, 0, v{r+2}, vcc
v_cndmask_b32 v{r+3}, 0, v{r+3}, vcc
v_max3_u32 v95, v95, v{r}, v{r+1}
v_max3_u32 v95, v95, v{r+2}, v{r+3}""")
    if sync:
        e("""v_cmp_eq_u32 vcc, -1, v95
s_cbranch_vccz L_A_cpd
s_sleep 2
s_sub_u32 s77, s77, 1
s_cmp_lg_u32 s77, 0
s_cbranch_scc1 L_A_cp
L_A_cpd:""")
    g.pmad2(136, 140, L4); g.pmad2(132, 136, L4); g.pmad2(128, 132, L4); g.pmad2(72, 128, Lg)
    g.gsum(72, 80)
    e("L_A_nocarry:\nds_write_b128 v89, v[72:75]")
    g.lds_signal(C_CAR)
    e("L_A_fin:")
    g.stamp()
    e(f"""s_lshl_b32 s76, s6, 3
s_lshl_b32 s77, s3, 1
s_add_u32 s76, s76, s77
s_lshl_b32 s76, s76, 5
s_add_u32 s76, s76, s7
s_lshl_b32 s76, s76, 10
s_add_u32 s80, s76, {WS_H}
s_add_u32 s81, s80, 16384""")
    for k in range(4):
        for ee in range(2):
            c_ = 72 + 2*ee
            g.pk(HLr(ee, 2*k), PWr(ee, 2*k), c_, HLr(ee, 2*k), 0)
            g.pk(HLi(ee, 2*k), PWr(ee, 2*k), c_, HLi(ee, 2*k), 1)
        for ee in range(2):
            c_ = 72 + 2*ee
            g.pk(HLr(ee, 2*k), PWi(ee, 2*k), c_, HLr(ee, 2*k), 1, neg=True)
            g.pk(HLi(ee, 2*k), PWi(ee, 2*k), c_, HLi(ee, 2*k), 0)
    for i in range(8):
        e(f"v_cvt_pk_bf16_f32 v{128+i}, v{HLr(0,i)}, v{HLr(1,i)}")
        e(f"v_cvt_pk_bf16_f32 v{136+i}, -v{HLi(0,i)}, -v{HLi(1,i)}")
    def tstage(d, sh, mhi, mlo):
        prs = [(128+4*k+r, 128+4*k+r+d) for k in range(4) for r in range(4) if not (r & d)]
        for n_, (lo, hi) in enumerate(prs): e(f"v_mov_b32 v{144+n_}, v{lo}")
        for n_, (lo, hi) in enumerate(prs): e(f"v_mov_b32_dpp v{lo}, v{hi} row_shr:{sh} row_mask:0xf bank_mask:{mhi}")
        for n_, (lo, hi) in enumerate(prs): e(f"v_mov_b32_dpp v{hi}, v{144+n_} row_shl:{sh} row_mask:0xf bank_mask:{mlo}")
    tstage(1, 4, "0xa", "0x5")
    tstage(2, 8, "0xc", "0x3")
    for part in range(2):
        for half in range(2):
            r = 128 + 8*part + 4*half
            e(f"buffer_store_dwordx4 v[{r}:{r+3}], v84, s[68:71], s{80+part} offen offset:{512*half} sc1")
    g.srd(72, 44, 2048*4096)
    e(f"""s_lshl_b32 s79, s6, 1
s_lshr_b32 s76, s3, 1
s_add_u32 s79, s79, s76
s_lshl_b32 s79, s79, 9
s_and_b32 s76, s3, 1
s_lshl_b32 s76, s76, 4
s_add_u32 s76, s76, s7
s_lshl_b32 s76, s76, 2
s_add_u32 s79, s79, s76
s_add_u32 s79, s79, {WS_FH}
s_lshl_b32 s78, s82, 2
s_add_u32 s78, s78, s3
s_lshl_b32 s81, s82, 9
s_add_u32 s81, s81, {WS_FH}
s_lshl_b32 s78, s78, 15
s_add_u32 s78, s78, {WS_H}
v_bfe_u32 v6, v2, 2, 1
v_lshlrev_b32 v6, 5, v6
v_lshl_add_u32 v6, v3, 3, v6
v_lshrrev_b32 v7, 3, v2
v_lshl_add_u32 v6, v7, 2, v6
v_and_b32 v7, 3, v2
v_add_u32 v6, v6, v7
v_lshlrev_b32 v6, 4, v6
v_and_b32 v228, 31, v1
v_lshlrev_b32 v228, 2, v228""")
    for m in range(4):
        e(f"""v_or_b32 v7, {m<<2}, v3
v_xor_b32 v7, v7, v2
v_lshlrev_b32 v7, 4, v7
v_lshl_add_u32 v{8+m}, v2, 10, v7
v_add_u32 v{12+m}, 0x10000, v{8+m}""")
    for mt in range(4):
        for h in range(2):
            x_, d_ = 240+2*mt+h, 248+2*mt+h
            a = 16 + 4*mt + 2*h
            e(f"""v_lshlrev_b32 v{a}, 16, v{x_}
v_and_b32 v{a+1}, 0xffff0000, v{x_}
v_lshlrev_b32 v32, 16, v{d_}
v_and_b32 v33, 0xffff0000, v{d_}
v_mul_f32 v{a}, v{a}, v32
v_mul_f32 v{a+1}, v{a+1}, v33
v_cvt_pk_bf16_f32 v32, v{a}, v{a+1}
v_lshlrev_b32 v{a}, 16, v32
v_and_b32 v{a+1}, 0xffff0000, v32""")
    g.flag_set(87, "s79")
    g.lds_signal(C_C)
    g.stamp()
    e("""s_and_b32 s79, s83, 1
s_lshl_b32 s79, s79, 14
s_lshr_b32 s80, s83, 1""")
    if sync:
        e("s_cmp_lg_u32 s3, 0\ns_cbranch_scc1 L_A_np")
        g.flag_poll(7, 228, "s81")
        g.lds_signal(C_C)
        e("L_A_np:")
    g.lds_wait(C_C, 5 if sync else 4, 7, sleep=1)
    g.stamp()
    g.vm = []
    def hld(s_):
        if s_ % 4 == 0:
            s4_ = s_ // 4
            e(f"""s_add_u32 s76, s80, {s4_}
s_and_b32 s76, s76, 3
s_lshl_b32 s76, s76, 12
s_xor_b32 s77, s79, {(s4_ >> 2) << 14}
s_add_u32 s76, s76, s77
s_add_u32 s76, s76, s78""")
        r = 96 + 4*s_
        g.vmi(f"buffer_load_dwordx4 v[{r}:{r+3}], v6, s[68:71], s76 offen offset:{1024*(s_%4)} sc1", f"H{s_}")
    def crd(s_, mt):
        part, sp = s_ // 16, s_ % 16
        r = 32 + 16*(s_ % 4) + 4*mt
        g.lgi(f"ds_read_b128 v[{r}:{r+3}], v{8+4*part+(sp&3)} offset:{mt*16384 + (sp>>2)*256}", f"C{s_}_{mt}")
    NH = opt('nh', 16)
    for s_ in range(NH): hld(s_)
    for s_ in range(2):
        for mt in range(4): crd(s_, mt)
    for s_ in range(32):
        g.vmwait(f"H{s_}")
        for mt in range(4):
            g.lgwait(f"C{s_}_{mt}")
            r = 32 + 16*(s_ % 4) + 4*mt; a = 16 + 4*mt
            e(f"v_mfma_f32_16x16x32_bf16 v[{a}:{a+3}], v[{r}:{r+3}], v[{96+4*s_}:{99+4*s_}], v[{a}:{a+3}]")
            if s_ + 2 < 32: crd(s_+2, mt)
        if s_ + NH < 32: hld(s_ + NH)
    g.stamp()
    e("""s_lshl_b32 s78, s82, 18
s_lshl_b32 s76, s3, 16
s_add_u32 s78, s78, s76
s_lshl_b32 s76, s83, 8
s_add_u32 s78, s78, s76
v_lshlrev_b32 v6, 4, v3
v_lshl_add_u32 v6, v2, 12, v6""")
    for mt in range(4):
        a = 16 + 4*mt
        e(f"buffer_store_dwordx4 v[{a}:{a+3}], v6, s[72:75], s78 offen offset:{64*mt} {OPT.get('ost', '')}")
    if g.stamps:
        e("s_waitcnt vmcnt(0)"); g.stamp()
    g.stamp_flush()
```

```python
from gen2 import *
def roleB(g):
    e = g
    stamp, stamp_flush, srd, lds_signal, lds_wait = g.stamp, g.stamp_flush, g.srd, g.lds_signal, g.lds_wait
    clean_check, flag_poll, flag_set, cexp, exp_bf16, pmul = g.clean_check, g.flag_poll, g.flag_set, g.cexp, g.exp_bf16, g.pmul
    sync, stamps, newl = g.sync, g.stamps, g.newl
    e("""s_sub_u32 s51, s3, 4
s_lshr_b32 s6, s51, 1
s_and_b32 s7, s51, 1
s_lshl_b32 s50, s4, 6
s_lshl_b32 s76, s5, 1
s_add_u32 s50, s50, s76
s_add_u32 s50, s50, s6
s_waitcnt lgkmcnt(0)""")
    srd(68, 48, 0x1000000)
    srd(72, 44, 2048*4096)
    srd(52, 26, 2048*1024)
    e("v_lshlrev_b32 v6, 4, v1      ; lane*16\nv_lshlrev_b32 v7, 2, v2     ; (lane&15)*4\nv_mov_b32 v16, 0")
    if sync:
        e(f"""s_cmp_lg_u32 s51, 3
s_cbranch_scc1 L_B_noclean
s_cmp_ge_u32 s2, {NCLEAN}
s_cbranch_scc1 L_B_noclean
v_mov_b32 v8, -1
v_mov_b32 v9, -1
v_mov_b32 v10, -1
v_mov_b32 v11, -1
s_mul_i32 s76, s2, {WS_SYNC_END//NCLEAN}""")
        for k in range(WS_SYNC_END // NCLEAN // 1024):
            e(f"buffer_store_dwordx4 v[8:11], v6, s[68:71], s76 offen sc1\ns_add_u32 s76, s76, 1024")
        e("""s_lshl_b32 s76, s2, 2
v_mov_b32 v12, s76
s_waitcnt vmcnt(0)
s_mov_b64 exec, 1
global_store_dword v12, v5, s[46:47] offset:64 sc1
s_mov_b64 exec, -1
L_B_noclean:""")
    e("""s_lshl_b32 s76, s50, 8
s_lshl_b32 s77, s7, 7
s_add_u32 s76, s76, s77
v_lshl_add_u32 v8, v1, 1, s76
s_lshl_b32 s76, s50, 1
v_mov_b32 v9, s76
global_load_ushort v20, v8, s[28:29]
global_load_ushort v21, v8, s[30:31]
global_load_ushort v22, v8, s[32:33]
global_load_ushort v23, v8, s[34:35]
global_load_ushort v24, v8, s[36:37]
global_load_ushort v25, v8, s[38:39]
global_load_ushort v26, v9, s[40:41]
global_load_ushort v27, v9, s[42:43]""")
    e("""s_cmp_lg_u32 s51, 2
s_cbranch_scc1 L_B_nopf
s_getpc_b64 s[76:77]
L_B_pc:
s_sub_u32 s76, s76, L_B_pc-%s
s_subb_u32 s77, s77, 0
s_and_b32 s78, s5, 7
s_lshl_b32 s78, s78, 12
v_lshl_add_u32 v10, v1, 6, s78
global_load_dword v11, v10, s[76:77]
L_B_nopf:""" % g.K)
    e(f"""s_cmp_lg_u32 s51, 0
s_cbranch_scc1 L_B_nob0
v_lshrrev_b32 v10, 3, v1
v_and_b32 v11, 7, v1
v_lshlrev_b32 v11, 4, v11
v_lshl_add_u32 v10, v10, 10, v11
s_lshl_b32 s76, s5, 16
s_lshl_b32 s77, s4, 7
s_add_u32 s76, s76, s77
s_mov_b32 m0, {L_K}""")
    for b in range(8):
        e("buffer_load_dwordx4 v10, s[52:55], s76 offen lds")
        if b < 7: e("s_add_u32 s76, s76, 8192\ns_add_u32 m0, m0, 1024")
    e(f"""L_B_nob0:
s_barrier
s_waitcnt vmcnt(0)
s_cmp_lg_u32 s51, 0
s_cbranch_scc1 L_B_nob1
s_setprio 3
v_bfe_u32 v10, v1, 2, 2
v_lshlrev_b32 v10, 7, v10
v_lshl_add_u32 v10, v3, 10, v10
v_and_b32 v11, 3, v1
v_lshl_add_u32 v10, v11, 3, v10
v_add_u32 v10, {L_K}, v10
v_lshlrev_b32 v11, 12, v2
v_lshl_add_u32 v11, v3, 4, v11
s_lshl_b32 s76, s4, 18
s_lshl_b32 s77, s5, 7
s_add_u32 s76, s76, s77
s_add_u32 s76, s76, {WS_UT}""")
    for half in range(2):
        for cb in range(2*half, 2*half+2):
            for oh in range(2):
                r = 160 + 4*(2*cb+oh)
                for hq in range(2):
                    e(f"ds_read_b64_tr_b16 v[{r+2*hq}:{r+2*hq+1}], v10 offset:{oh*4096 + hq*512 + cb*32}")
        e("s_waitcnt lgkmcnt(0)")
        for cb in range(2*half, 2*half+2):
            for oh in range(2):
                r = 160 + 4*(2*cb+oh)
                e(f"buffer_store_dwordx4 v[{r}:{r+3}], v11, s[68:71], s76 offen offset:{oh*64} sc1")
            if cb < 3: e("s_add_u32 s76, s76, 0x10000")
    if sync: e("global_load_dword v192, v7, s[46:47] offset:64 sc1")
    lds_signal(3)
    e("s_setprio 0\nL_B_nob1:")
    stamp()
    def b1_flag():
        if not sync: return
        e("""s_cmp_lg_u32 s51, 0
s_cbranch_scc1 L_B_nob2
s_setprio 3
s_waitcnt vmcnt(0)
v_cmp_ne_u32 vcc, 1, v192
s_cbranch_vccz L_B_cl1""")
        clean_check(12, 7)
        e(f"""L_B_cl1:
s_lshl_b32 s78, s4, 9
s_lshl_b32 s76, s5, 2
s_add_u32 s78, s78, s76
s_add_u32 s78, s78, {WS_FU}""")
        flag_set(16, "s78")
        e("s_setprio 0\nL_B_nob2:")
    ZR, ZI, DT, T0, T1 = 28, 29, 30, 31, 32
    for r in range(20, 28): e(f"v_lshlrev_b32 v{r}, 16, v{r}")
    exp_bf16(DT, 26, T0, T1)
    e(f"""v_mul_f32 v{ZR}, v{DT}, v20
v_mul_f32 v{ZI}, v{DT}, v21
v_mul_f32 v{ZR}, {f32(L2E)}, v{ZR}
v_mul_f32 v{ZI}, {f32(INV2PI)}, v{ZI}
v_mul_f32 v22, v{DT}, v22
v_mul_f32 v23, v{DT}, v23""")
    E = lambda c: 34 + 2*c
    E128 = 52
    H = lambda a: 54 + 2*a
    pmul(H(0), 24, 22)
    cexp(E(1), E(1)+1, ZR, ZI, "1.0", T0, T1)
    cexp(E(8), E(8)+1, ZR, ZI, f32(8.0), T0, T1)
    cexp(E128, E128+1, ZR, ZI, f32(128.0), T0, T1)
    e(f"""s_mul_i32 s76, s6, {USTR}
s_mul_i32 s77, s7, 2304
s_add_u32 s76, s76, s77
s_add_u32 s76, s76, {L_U}
v_lshl_add_u32 v8, v1, 2, s76
v_and_b32 v9, 7, v1
v_mul_u32_u24 v9, 288, v9
v_lshl_add_u32 v9, v3, 4, v9
v_add_u32 v9, s76, v9""")
    LO = 96
    HF = 112
    D = lambda T: 128 + 4*T
    X0, X1, PK = 88, 90, 92
    def rd_half(dst, hf):
        m = "0x00ff00ff" if hf == 0 else "0xff00ff00"
        e(f"s_mov_b32 exec_lo, {m}\ns_mov_b32 exec_hi, {m}")
        for ks in range(4):
            e(f"ds_read_b128 v[{dst+4*ks}:{dst+4*ks+3}], v9 offset:{64*ks}")
        e("s_mov_b64 exec, -1")
    pk = [0]
    def put(row, x, conj):
        p = PK + (pk[0] % 4); pk[0] += 1
        e(f"v_cvt_pk_bf16_f32 v{p}, v{x}, {'-' if conj else ''}v{x+1}")
        e(f"ds_write_b32 v8, v{p} offset:{(row % 8)*288}")
    e(f"v_mov_b32 v{PK+3}, 0x3f80\nds_write_b32 v8, v{PK+3}")
    put(1, E(8), False)
    cur = E(8)
    for b in range(2, 16):
        nx = X0 if b % 2 == 0 else X1
        pmul(nx, cur, E(8)); cur = nx
        if b == 8: rd_half(LO, 0)
        put(b, cur, False)
    rd_half(LO, 1)
    for c in range(2, 8): pmul(E(c), E(c-1), E(1))
    for a in range(1, 17): pmul(H(a), H(a-1), E128)
    xx = [0]
    def hrow(row, a, c):
        if c == 0:
            put(row, H(a), True)
        else:
            x = X0 if xx[0] % 2 == 0 else X1; xx[0] += 1
            pmul(x, H(a), E(c)); put(row, x, True)
    tiles = [
        [(r // 8, r % 8) for r in range(16)],
        [[(2 + g//2, 4*(g%2)), (2 + g//2, 4*(g%2)+2), (4+g, 0), (4+g, 4)][r] for g in range(4) for r in range(4)],
        [[(8+g, 0), (12+g, 0), (16, 0) if g == 0 else None, None][r] for g in range(4) for r in range(4)],
    ]
    for T in range(3):
        if T == opt('b1f', 1): b1_flag()
        for hf in range(2):
            for row in range(8*hf, 8*hf+8):
                if tiles[T][row] is not None: hrow(row, *tiles[T][row])
            rd_half(HF, hf)
        e("s_waitcnt lgkmcnt(0)")
        for ks in range(4):
            c = "0" if ks == 0 else f"v[{D(T)}:{D(T)+3}]"
            e(f"v_mfma_f32_16x16x32_bf16 v[{D(T)}:{D(T)+3}], v[{HF+4*ks}:{HF+4*ks+3}], v[{LO+4*ks}:{LO+4*ks+3}], {c}")
    stamp()
    lds_wait(3, 1, 10, sleep=1)
    e(f"""s_lshl_b32 s78, s6, 1
s_xor_b32 s76, s7, 1
s_add_u32 s76, s76, s78
s_mul_i32 s76, s76, {KSTR}
s_add_u32 s76, s76, {L_K+16}
s_add_u32 s78, s78, s7
s_mul_i32 s78, s78, {KSTR}
s_add_u32 s78, s78, {L_K+16}
v_add_u32 v10, s76, v6
v_add_u32 v11, s78, v6
s_lshl_b32 s79, s6, 2
v_add_u32 v17, s79, v4""")
    for T in range(3): e(f"ds_write_b128 v10, v[{D(T)}:{D(T)+3}] offset:{1024*T}")
    def pair_sync(k):
        l = newl("ps")
        e(f"""s_mov_b64 exec, 1
ds_add_u32 v17, v5 offset:{4*k}
s_mov_b64 exec, -1
{l}:
ds_read_b32 v12, v17 offset:{4*k}
s_waitcnt lgkmcnt(0)
v_readfirstlane_b32 s76, v12
s_cmp_ge_u32 s76, 2
s_cbranch_scc1 {l}d
s_sleep 1
s_branch {l}
{l}d:""")
    pair_sync(4)
    for T in range(3): e(f"ds_read_b128 v[{96+4*T}:{99+4*T}], v11 offset:{1024*T}")
    e(f"""s_lshl_b32 s76, s7, 1
s_sub_u32 s79, s78, s76              ; base_c
v_lshlrev_b32 v12, 4, v2             ; 16b
v_lshrrev_b32 v13, 1, v3
v_lshlrev_b32 v13, 8, v13            ; 2*128*(g/2)
v_and_b32 v14, 1, v3
v_lshl_add_u32 v13, v14, 3, v13
v_add_u32 v13, v13, v12
s_add_u32 s76, s79, {4094 - 516}
v_sub_u32 v13, s76, v13              ; F1'
v_lshl_add_u32 v14, v3, 8, v12
s_add_u32 s76, s79, {4094 - 3080}
v_sub_u32 v14, s76, v14              ; F2'
v_and_b32 v12, 1, v2
v_lshlrev_b32 v12, 1, v12
v_add_u32 v15, v14, v12              ; F2p
v_sub_u32 v18, v14, v12              ; F2m
v_lshl_add_u32 v12, v1, 2, s78
v_mov_b32 v19, s79
s_waitcnt lgkmcnt(0)""")
    for k in range(12): e(f"v_add_f32 v{128+k}, v{128+k}, v{96+k}")
    for T in range(3):
        e(f"v_cvt_pk_bf16_f32 v{96+2*T}, v{D(T)}, v{D(T)+1}\nv_cvt_pk_bf16_f32 v{97+2*T}, v{D(T)+2}, v{D(T)+3}")
    e("""s_mov_b64 exec, 0x1ffff
ds_write_b32 v12, v16 offset:4092
s_mov_b64 exec, 1""")
    for k in range(4): e(f"ds_write_b16 v19, v101 offset:{2*k}")
    e("s_mov_b64 exec, -1")
    def w16(T, r, addr, off):
        reg = 96 + 2*T + r//2
        e(f"ds_write_b16{'_d16_hi' if r % 2 else ''} v{addr}, v{reg} offset:{off}")
    for r, ex in ((1, 1536), (0, 1024)):
        for dl in range(-4, 5):
            w16(2, r, {4: 15, -4: 18}.get(dl, 14), 2*(1540 - (ex+dl)))
    for dl in range(-2, 3): w16(1, 2, 14, 2*(1540 - (512+dl)))
    for dl in range(-1, 2): w16(1, 3, 14, 2*(1540 - (516+dl)))
    for dl in range(-1, 2): w16(1, 0, 13, 2*(258 - (256+dl)))
    w16(1, 1, 13, 0)
    for r in range(4): w16(0, r, 13, 2*(258 - r))
    stamp()
    e(f"""s_cmp_lg_u32 s51, 3
s_cbranch_scc1 L_B_nocp
s_lshl_b32 s76, s5, 14
v_lshl_add_u32 v193, v1, 7, s76
v_add_u32 v194, 0x2000, v193
global_load_dword v195, v193, s[18:19]
global_load_dword v196, v194, s[18:19]
global_load_dword v197, v193, s[20:21]
global_load_dword v198, v194, s[20:21]
L_B_nocp:""")
    e("s_setprio 3")
    if sync:
        e("s_cmp_lg_u32 s51, 2\ns_cbranch_scc1 L_B_npu")
        clean_check(12, 7)
        e(f"""v_and_b32 v12, 31, v1
v_lshlrev_b32 v12, 2, v12
s_lshl_b32 s78, s4, 9
s_add_u32 s78, s78, {WS_FU}""")
        flag_poll(13, 12, "s78")
        lds_signal(C_UT)
        e("L_B_npu:\ns_setprio 0")
        lds_wait(C_UT, 1, 13, sleep=2)
        e("s_setprio 3")
    e(f"""s_lshl_b32 s78, s50, 12
s_lshl_b32 s76, s7, 11
s_add_u32 s78, s78, s76
s_add_u32 s78, s78, {WS_UT}
buffer_load_dwordx4 v[96:99], v6, s[68:71], s78 offen sc1
buffer_load_dwordx4 v[100:103], v6, s[68:71], s78 offen offset:1024 sc1
s_mul_i32 s80, s6, {USTR}
s_add_u32 s80, s80, {L_U}            ; U(ch)
s_add_u32 s76, s76, s80
v_add_u32 v12, s76, v6
v_add_u32 v13, s80, v6
v_mov_b32 v104, 0
v_mov_b32 v105, 0
v_mov_b32 v106, 0
v_mov_b32 v107, 0
s_cmp_lg_u32 s7, 0
s_cbranch_scc1 L_B_nz
s_mov_b32 exec_hi, 0
ds_write_b128 v13, v[104:107]
s_mov_b64 exec, -1
L_B_nz:
s_waitcnt vmcnt(0)
ds_write_b128 v12, v[96:99] offset:512
ds_write_b128 v12, v[100:103] offset:1536""")
    e(f"""s_lshl_b32 s76, s6, 1
s_mul_i32 s76, s76, {KSTR}
s_add_u32 s76, s76, {L_K + 16 + 2*2031 - 448 - 512}
v_and_b32 v12, 1, v2
v_xor_b32 v12, 1, v12                ; a even
v_mul_u32_u24 v13, {KSTR - 2}, v12
v_lshl_add_u32 v13, v3, 4, v13
v_lshlrev_b32 v12, 1, v2
v_sub_u32 v13, v13, v12
v_add_u32 v8, s76, v13
v_add_u32 v9, -1024, v8
v_add_u32 v10, -2048, v8
v_add_u32 v11, -3072, v8
v_lshlrev_b32 v12, 5, v2
v_lshl_add_u32 v12, v3, 4, v12
s_add_u32 s76, s80, {480 - 448}
v_add_u32 v14, s76, v12
v_lshlrev_b32 v12, 5, v2
v_lshl_add_u32 v12, v3, 3, v12
s_add_u32 s76, s80, 512
v_add_u32 v15, s76, v12""")
    pair_sync(6)
    e("s_setprio 1")
    stamp()
    e("s_cmp_lg_u32 s7, 0\ns_cbranch_scc1 L_B_conv1")
    ACC = lambda k: 32 + 4*k
    def conv(tl):
        nf = max(tl) + 1
        AF = lambda st, jj: 64 + 64*st + 4*jj
        BF = lambda st, kk: 96 + 64*st + 4*kk
        def reads(mu0):
            st = mu0 % 2; ops = []
            for jj in range(nf):
                o = (7 - mu0)*16 + (128 if jj % 2 == 0 else 0)
                r = AF(st, jj)
                ops.append(f"ds_read2_b32 v[{r}:{r+1}], v{8 + jj//2} offset0:{o} offset1:{o+1}")
                ops.append(f"ds_read2_b32 v[{r+2}:{r+3}], v{8 + jj//2} offset0:{o+2} offset1:{o+3}")
                r = BF(st, jj)
                ops.append(f"ds_read_b128 v[{r}:{r+3}], v14 offset:{512*jj + 64*(7-mu0)}")
            return ops
        for op in reads(0): e(op)
        for mu0 in range(8):
            st = mu0 % 2
            e("s_waitcnt lgkmcnt(0)")
            nxt = reads(mu0+1) if mu0 < 7 else []
            mf = []
            for jj in range(nf):
                for k, t in enumerate(tl):
                    if jj <= t:
                        a = ACC(k)
                        c = "0" if (mu0 == 0 and jj == 0) else f"v[{a}:{a+3}]"
                        mf.append(f"v_mfma_f32_16x16x32_bf16 v[{a}:{a+3}], v[{AF(st,jj)}:{AF(st,jj)+3}], v[{BF(st,t-jj)}:{BF(st,t-jj)+3}], {c}")
            for n_, m in enumerate(mf):
                e(m)
                for _ in range(2):
                    if nxt: e(nxt.pop(0))
            for op in nxt: e(op)
        for k, t in enumerate(tl):
            e(f"ds_read_b64 v[{48+2*k}:{49+2*k}], v15 offset:{512*t}")
    conv([6, 7, 0, 1])
    e("s_mov_b32 s81, 3072\ns_mov_b32 s82, 0\ns_branch L_B_conv2\nL_B_conv1:")
    conv([4, 5, 2, 3])
    e("s_mov_b32 s81, 2048\ns_mov_b32 s82, 1024\nL_B_conv2:")
    e("s_nop 7\ns_waitcnt lgkmcnt(0)")
    stamp()
    for k in range(4):
        for h in range(2):
            a = ACC(k) + 2*h; u_ = 48 + 2*k + h; t = 80
            e(f"""v_cvt_pk_bf16_f32 v{t}, v{a}, v{a+1}
v_lshlrev_b32 v{t+1}, 16, v{u_}
v_and_b32 v{t+2}, 0xffff0000, v{u_}
v_mul_f32 v{t+1}, v{t+1}, v27
v_mul_f32 v{t+2}, v{t+2}, v27
v_cvt_pk_bf16_f32 v{t+1}, v{t+1}, v{t+2}
v_lshlrev_b32 v{t+2}, 16, v{t}
v_and_b32 v{t}, 0xffff0000, v{t}
v_lshlrev_b32 v{t+3}, 16, v{t+1}
v_and_b32 v{t+1}, 0xffff0000, v{t+1}
v_add_f32 v{t+2}, v{t+2}, v{t+3}
v_add_f32 v{t}, v{t}, v{t+1}
v_cvt_pk_bf16_f32 v{64+2*k+h}, v{t+2}, v{t}""")
    e(f"""v_lshlrev_b32 v12, 5, v2
v_lshrrev_b32 v13, 1, v3
v_lshl_add_u32 v12, v13, 4, v12
v_and_b32 v13, 1, v3
v_lshl_add_u32 v12, v13, 9, v12
s_lshl_b32 s78, s50, 12
s_add_u32 s78, s78, {WS_YT}
s_add_u32 s81, s81, s78
s_add_u32 s82, s82, s78
v_permlane16_swap_b32 v64, v66
v_permlane16_swap_b32 v65, v67
v_permlane16_swap_b32 v68, v70
v_permlane16_swap_b32 v69, v71
buffer_store_dwordx4 v[64:67], v12, s[68:71], s81 offen sc1
buffer_store_dwordx4 v[68:71], v12, s[68:71], s82 offen sc1
s_lshl_b32 s78, s4, 1
s_add_u32 s78, s78, s7
s_lshl_b32 s78, s78, 9
s_and_b32 s76, s50, 63
s_lshl_b32 s76, s76, 2
s_add_u32 s78, s78, s76
s_add_u32 s78, s78, {WS_FY}""")
    e("s_setprio 3")
    lds_signal(C_CONV)
    flag_set(16, "s78")
    stamp()
    e(f"""s_lshr_b32 s76, s5, 2               ; t
s_add_u32 s76, s76, 2
s_bfe_u32 s76, s76, 0x10002          ; nh(t) = ((t+2)>>2)&1
s_lshl_b32 s78, s4, 1
s_add_u32 s78, s78, s76
s_lshl_b32 s78, s78, 9
s_add_u32 s78, s78, {WS_FY}
v_lshrrev_b32 v10, 3, v1
v_and_b32 v11, 7, v1
v_lshlrev_b32 v11, 4, v11
v_lshl_add_u32 v10, v10, 12, v11
s_lshl_b32 s79, s4, 18
s_lshl_b32 s76, s51, 16
s_add_u32 s79, s79, s76
s_lshl_b32 s76, s5, 7
s_add_u32 s79, s79, s76
s_add_u32 s79, s79, {WS_YT}
s_add_u32 s80, s79, 0x8000
s_mul_i32 s81, s51, {KSTR}
s_add_u32 s81, s81, {L_K+16}
v_add_u32 v11, s81, v6
v_bfe_u32 v12, v1, 2, 2
v_lshl_add_u32 v12, v3, 2, v12
v_lshlrev_b32 v12, 7, v12
v_and_b32 v13, 3, v1
v_lshl_add_u32 v12, v13, 3, v12
v_add_u32 v12, s81, v12
v_lshlrev_b32 v13, 12, v2
v_lshl_add_u32 v13, v3, 4, v13
s_lshl_b32 s82, s5, 18
s_lshl_b32 s76, s4, 8
s_add_u32 s82, s82, s76
s_lshl_b32 s76, s51, 6
s_add_u32 s82, s82, s76
s_add_u32 s82, s82, 2048""")
    if sync:
        e("s_cmp_lg_u32 s51, 2\ns_cbranch_scc1 L_B_npy\nv_lshlrev_b32 v15, 2, v1")
        flag_poll(14, 15, "s78")
        lds_signal(C_CONV)
        e("L_B_npy:")
    e("s_setprio 0")
    lds_wait(C_CONV, 5 if sync else 4, 14, sleep=2)
    e("s_setprio 3")
    e("""buffer_load_dwordx4 v[96:99], v10, s[68:71], s79 offen sc1
buffer_load_dwordx4 v[100:103], v10, s[68:71], s80 offen sc1""")
    e("""s_waitcnt vmcnt(0)
ds_write_b128 v11, v[96:99]
ds_write_b128 v11, v[100:103] offset:1024""")
    for tq in range(4): e(f"ds_read_b64_tr_b16 v[{104+2*tq}:{105+2*tq}], v12 offset:{32*tq}")
    for tq in range(4):
        r = 112 + 4*tq; s_ = 104 + 2*tq
        e(f"""s_waitcnt lgkmcnt({3-tq})
v_lshlrev_b32 v{r}, 16, v{s_}
v_and_b32 v{r+1}, 0xffff0000, v{s_}
v_lshlrev_b32 v{r+2}, 16, v{s_+1}
v_and_b32 v{r+3}, 0xffff0000, v{s_+1}
buffer_store_dwordx4 v[{r}:{r+3}], v13, s[72:75], s82 offen {OPT.get('ost', '')}""")
        if tq < 3: e("s_add_u32 s82, s82, 0x10000")
    if stamps:
        e("s_waitcnt vmcnt(0)"); stamp()
    stamp_flush()
```

```python
from gen3 import *
def roleA(g):
    e = g; sync = g.sync
    rotm = opt('rotm', 7)
    e(f"""v_mov_b32 v7, 0
v_lshl_add_u32 v6, v2, 2, v4
ds_write_b32 v6, v7
s_lshr_b32 s6, s4, 1
s_lshl_b32 s6, s6, 2
s_lshr_b32 s51, s5, 2
s_add_u32 s6, s6, s51           ; c
s_and_b32 s7, s4, 1
s_lshl_b32 s7, s7, 2
s_and_b32 s50, s5, 3
s_add_u32 s7, s7, s50           ; Q
s_mov_b32 s50, s7
s_mov_b32 s82, s6
s_mov_b32 s83, s7
v_lshrrev_b32 v48, 3, v1
v_and_b32 v49, 7, v1
v_bfe_u32 v50, v1, 4, 1
s_and_b32 s76, s3, 1
s_lshl_b32 s76, s76, 2""")
    for b2 in range(2):
        e(f"""v_or_b32 v51, s76, v50
v_or_b32 v51, {2*b2}, v51
v_xor_b32 v51, v51, v49
v_lshlrev_b32 v51, 4, v51
v_lshl_add_u32 v{6+b2}, v48, 10, v51
v_add_u32 v{6+b2}, {b2*(8192-1024)}, v{6+b2}""")
    e("""v_and_b32 v50, 3, v48
v_lshlrev_b32 v50, 13, v50
v_lshrrev_b32 v48, 5, v1
v_lshl_add_u32 v48, v48, 11, v50""")
    for b2 in range(2):
        e(f"""v_or_b32 v51, {4*b2}, v3
v_xor_b32 v51, v51, v49
v_lshl_add_u32 v{10+b2}, v51, 4, v48
v_add_u32 v{10+b2}, {b2*(4096-1024)}, v{10+b2}""")
    e(f"""s_lshl_b32 s7, s7, 1
s_lshr_b32 s77, s3, 2
s_add_u32 s7, s7, s77           ; q = 2Q + ph
s_lshl_b32 s78, s6, 17
s_lshl_b32 s76, s3, 14
s_add_u32 s78, s78, s76
s_lshl_b32 s79, s7, 15
s_and_b32 s76, s3, 1
s_lshl_b32 s76, s76, 10
s_add_u32 s79, s79, s76
s_lshl_b32 s80, s3, 11
s_lshl_b32 s76, s83, 7
v_lshl_add_u32 v52, v1, 1, s76
v_lshl_add_u32 v232, v3, 3, s76
v_lshrrev_b32 v48, 1, v2
v_xor_b32 v48, v48, v3
v_lshlrev_b32 v48, 4, v48
v_lshrrev_b32 v49, 2, v2
v_lshlrev_b32 v49, 3, v49
v_and_b32 v50, 3, v2
v_add_u32 v49, v49, v50
v_lshl_add_u32 v12, v49, 7, v48
s_and_b32 s76, s3, 3
s_lshl_b32 s76, s76, 12
v_add_u32 v12, s76, v12
v_xor_b32 v13, 64, v12
v_lshl_add_u32 v14, v2, 7, v48
s_lshl_b32 s76, s77, 13
s_add_u32 s76, s76, 16384
v_add_u32 v14, s76, v14
v_xor_b32 v15, 64, v14
v_add_u32 v124, 0x10000, v12
v_add_u32 v125, 0x10000, v13
v_add_u32 v126, 0x10000, v14
v_add_u32 v127, 0x10000, v15
s_waitcnt lgkmcnt(0)
s_and_b32 s34, s3, 3
s_lshr_b32 s35, s3, 2""")
    g.srd(52, 8, 2048*1024)
    e("""s_bitcmp1_b32 s3, 1
s_cselect_b32 s56, s16, s14
s_cselect_b32 s57, s17, s15
s_and_b32 s57, s57, 0xffff
s_mov_b32 s58, 0x80000
s_mov_b32 s59, 0x00020000""")
    g.vmi("global_load_ushort v101, v52, s[10:11]")
    g.vmi("global_load_ushort v102, v52, s[12:13]")
    g.vmi("global_load_ushort v103, v52, s[22:23]")
    for mt in range(4):
        g.vmi(f"global_load_dwordx2 v[{248+2*mt}:{249+2*mt}], v232, s[24:25] offset:{32*mt}", "par")
    def ld(kk):
        if kk < 8:
            e(f"""s_add_u32 s76, s50, {kk}
s_and_b32 s76, s76, 7
s_lshl_b32 s76, s76, 7
s_add_u32 m0, s80, {(kk%4)*32768}
s_add_u32 s77, s76, s78
s_add_u32 s76, s76, s79""")
            g.vmi("buffer_load_dwordx4 v6, s[52:55], s77 offen lds")
            g.vmi("buffer_load_dwordx4 v7, s[52:55], s77 offen offset:1024 lds")
            e(f"s_add_u32 m0, s80, {(kk%4)*32768 + 16384}\ns_nop 0")
            g.vmi("buffer_load_dwordx4 v10, s[56:59], s76 offen lds")
            g.vmi("buffer_load_dwordx4 v11, s[56:59], s76 offen offset:1024 lds", f"L{kk}")
        else:
            j = kk - 8
            for k in range(4):
                e(f"""v_xor_b32 v9, {k<<4}, v8
v_add_u32 v9, s36, v9
v_and_b32 v9, 0x3ff, v9
s_add_u32 m0, s37, {j*32768 + k*1024}
s_add_u32 s76, s38, {((j&1)*32 + k)*1024}""")
                g.vmi(f"buffer_load_dwordx4 v9, s[{60+4*(j>>1)}:{63+4*(j>>1)}], s76 offen lds", f"L{kk}")
    ld(0); ld(1)
    g.srd(68, 48, 0x1000000)
    e("""s_bitcmp1_b32 s83, 0
s_cselect_b32 s60, s20, s18
s_cselect_b32 s61, s21, s19
s_cselect_b32 s64, s18, s20
s_cselect_b32 s65, s19, s21
s_and_b32 s61, s61, 0xffff
s_and_b32 s65, s65, 0xffff
s_mov_b32 s62, 0x80000
s_mov_b32 s63, 0x00020000
s_mov_b32 s66, 0x80000
s_mov_b32 s67, 0x00020000
s_lshl_b32 s76, s34, 6
v_lshlrev_b32 v8, 4, v1
v_xor_b32 v8, s76, v8           ; lane*16 ^ ((4w&15)<<4)
s_lshr_b32 s36, s83, 1
s_lshl_b32 s36, s36, 8
s_lshl_b32 s37, s3, 12          ; lds: 4w*1024
s_lshl_b32 s38, s83, 16
s_add_u32 s38, s38, s37         ; (64dt + 4w)*1024""")
    lam = (160, 162); lam2 = (164, 166); lam8 = (168, 170); wA = (172, 174); cf = (176, 178)
    L4 = (180, 182); Lg = (184, 186); wS = (188, 190)
    PWr = lambda ee, i: 196 + 16*ee + i
    PWi = lambda ee, i: 204 + 16*ee + i
    ZR, ZI, LR, LI, T0, T1, DTV = 104, 105, 106, 107, 108, 109, 110
    ld(2)
    e(f"""v_lshlrev_b32 v111, 3, v1
v_add_u32 v111, {L_TAB}, v111
v_lshlrev_b32 v112, 6, v1
s_and_b32 s33, s3, 1
s_lshl_b32 s33, s33, 4
s_add_u32 s33, s33, {L_PW}
v_add_u32 v112, s33, v112""")
    g.vmwait("par")
    e(f"""v_lshlrev_b32 v{LR}, 16, v101
v_lshlrev_b32 v{LI}, 16, v102
v_lshlrev_b32 v103, 16, v103""")
    g.exp_bf16(DTV, 103, T0, T1)
    e(f"""v_mul_f32 v{ZR}, v{DTV}, v{LR}
v_mul_f32 v{ZI}, v{DTV}, v{LI}
v_mul_f32 v{ZR}, {f32(L2E)}, v{ZR}
v_mul_f32 v{ZI}, {f32(INV2PI)}, v{ZI}
s_cmp_ge_u32 s3, 5
s_cbranch_scc1 L_A_t2
s_lshl_b32 s33, s3, 5
s_cmp_eq_u32 s3, 4
s_cselect_b32 s32, 128, 8
s_cselect_b32 s33, 0, s33
s_lshl_b32 s31, s3, 11
v_add_u32 v111, s31, v111""")
    for k in range(4):
        e(f"v_cvt_f32_u32 v113, s33\ns_add_u32 s33, s33, s32")
        g.cexp(114+2*(k%2), 115+2*(k%2), ZR, ZI, "v113", T0, T1)
        e(f"ds_write_b64 v111, v[{114+2*(k%2)}:{115+2*(k%2)}] offset:{512*k}")
    e("s_branch L_A_t3\nL_A_t2:")
    g.cexp(114, 115, ZR, ZI, "1.0", T0, T1)
    e(f"""v_add_f32 v{T0}, -1.0, v114
v_mul_f32 v{T1}, v{LR}, v{LR}
v_fmac_f32 v{T1}, v{LI}, v{LI}
v_rcp_f32 v{T1}, v{T1}
v_mul_f32 v116, v{T0}, v{LR}
v_fmac_f32 v116, v115, v{LI}
v_mul_f32 v117, v115, v{LR}
v_fma_f32 v117, -v{T0}, v{LI}, v117
v_add_f32 v{T1}, v{T1}, v{T1}
v_mul_f32 v116, v116, v{T1}
v_mul_f32 v117, v117, v{T1}
s_cmp_lg_u32 s3, 5
s_cbranch_scc1 L_A_t4
ds_write_b64 v111, v[114:115] offset:{512*20}
ds_write_b64 v111, v[116:117] offset:{512*23}""")
    g.cmul(118, 119, 114, 115, 114, 115)
    e(f"ds_write_b64 v111, v[118:119] offset:{512*21}")
    g.cexp(120, 121, ZR, ZI, f32(512.0), T0, T1)
    e(f"ds_write_b64 v111, v[120:121] offset:{512*22}\ns_branch L_A_t3\nL_A_t4:")
    e("s_and_b32 s33, s3, 1\ns_lshl_b32 s33, s33, 2\ns_add_u32 s33, s33, 1\nv_cvt_f32_u32 v113, s33")
    g.cexp(118, 119, ZR, ZI, "v113", T0, T1)
    g.cmul(96, 120, 118, 119, 116, 117)
    for k in range(1, 4): g.cmul(96+k, 120+k, 96+k-1, 120+k-1, 114, 115)
    e("ds_write_b128 v112, v[96:99]\nds_write_b128 v112, v[120:123] offset:32\nL_A_t3:")
    def addrs():
        e(f"""s_lshl_b32 s33, s3, 10
v_lshl_add_u32 v128, v1, 4, s33
v_add_u32 v128, {L_SEG}, v128
v_lshlrev_b32 v131, 4, v2
s_lshl_b32 s33, s35, 10
s_add_u32 s33, s33, {L_SUM4}
v_add_u32 v129, s33, v131
s_lshl_b32 s33, s34, 8
v_add_u32 v130, s33, v129
s_lshl_b32 s33, s35, 12
s_add_u32 s33, s33, {L_SEG}
v_add_u32 v132, s33, v131
s_lshl_b32 s33, s35, 8
s_add_u32 s33, s33, {L_CAR}
v_add_u32 v133, s33, v131
v_lshrrev_b32 v134, 1, v3
v_lshlrev_b32 v134, 15, v134
v_and_b32 v135, 3, v2
v_lshlrev_b32 v135, 3, v135
v_and_b32 v136, 1, v3
v_lshl_add_u32 v135, v136, 2, v135
v_lshrrev_b32 v136, 2, v2
v_add_u32 v135, v135, v136
v_lshl_add_u32 v134, v135, 4, v134
v_mov_b32 v135, 0
s_sub_i32 s33, s6, 1
v_sub_u32 v140, s33, v3
v_lshlrev_b32 v228, 2, v2""")
        for qq in range(3, -1, -1):
            e(f"""v_add_u32 v{140+qq}, {-4*qq}, v140
v_max_i32 v{140+qq}, 0, v{140+qq}
v_lshl_add_u32 v{140+qq}, v{140+qq}, 8, v131""")
        e(f"""v_and_b32 v137, 3, v2
v_lshlrev_b32 v137, 2, v137
v_lshrrev_b32 v136, 2, v2
v_add_u32 v137, v137, v136
s_lshl_b32 s33, s35, 4
v_add_u32 v137, s33, v137
v_lshlrev_b32 v233, 7, v137
v_add_u32 v233, {L_PW}, v233
v_lshlrev_b32 v137, 4, v137
v_add_u32 v137, {L_TAB}, v137
v_lshl_add_u32 v136, v3, 9, v137
s_lshl_b32 s33, s34, 11
v_add_u32 v138, s33, v136
v_sub_u32 v139, v137, v138
v_add_u32 v139, v139, v137""")
        e(f"""v_bfe_u32 v234, v2, 1, 1
v_lshrrev_b32 v235, 3, v2
v_lshl_add_u32 v234, v235, 1, v234
s_and_b32 s33, s3, 1
s_lshl_b32 s33, s33, 2
v_or_b32 v234, s33, v234
v_lshrrev_b32 v235, 1, v3
v_xor_b32 v234, v234, v235
v_lshlrev_b32 v234, 4, v234
v_and_b32 v235, 1, v3
v_lshl_add_u32 v234, v235, 3, v234
v_lshl_add_u32 v234, v2, 7, v234
s_lshl_b32 s33, s3, 11
v_add_u32 v234, s33, v234""")
    addrs()
    e("s_waitcnt lgkmcnt(0)")
    def tabreads():
        L = []
        for reg, addr, off in ((lam[0], 137, 20*512), (lam2[0], 137, 21*512), (wA[0], 139, 15*512), (lam8[0], 137, 512), (cf[0], 137, 23*512),
                               (wS[0], 138, 0), (L4[0], 137, 22*512), (Lg[0], 136, 16*512)):
            L.append((f"ds_read_b128 v[{reg}:{reg+3}], v{addr} offset:{off}", "tab"))
        for ee in range(2):
            for k in range(4):
                r = 196 + 16*ee + 4*k
                L.append((f"ds_read_b128 v[{r}:{r+3}], v233 offset:{64*ee + 16*k}", "tab"))
        return L
    tr = tabreads()
    cl = []
    acc = lambda mt, nt: 16 + 16*mt + 4*nt
    fA = lambda n, mt: 48 + 24*(n % 2) + 4*mt
    fB = lambda n, nt: 56 + 24*(n % 2) + 4*nt
    def reads(n):
        kk, ks = n // 2, n % 2
        sl = kk % 4; hi = 112 if sl >= 2 else 0; so = (sl % 2)*32768
        rA = lambda mt: (f"ds_read_b128 v[{fA(n,mt)}:{fA(n,mt)+3}], v{12+ks+hi} offset:{so + mt*512}", f"A{mt}_{n}")
        rB = lambda nt: (f"ds_read_b128 v[{fB(n,nt)}:{fB(n,nt)+3}], v{14+ks+hi} offset:{so + nt*2048}", f"B{nt}_{n}")
        return [rA(0), rB(0), rA(1), rB(1), rB(2), rB(3)]
    g.vmwait("L0")
    e("s_barrier")
    g.stamp()
    for r in reads(0): g.lgi(*r)
    for mt in range(4):
        if mt: e(f"v_xor_b32 v235, {32*mt}, v234")
        g.lgi(f"ds_read_b64 v[{240+2*mt}:{241+2*mt}], v{235 if mt else 234}")
    ld(3)
    for n in range(16):
        kk = n // 2
        if n % 2 == 1 and n < 15:
            g.vmwait(f"L{kk+1}")
            e("s_barrier")
            if opt('g1st', 0): g.stamp()
        nxt = reads(n+1) if n < 15 else []
        need = {0: f"B0_{n}", 1: f"A1_{n}", 2: f"B1_{n}", 4: f"B2_{n}", 6: f"B3_{n}"}
        for m in range(8):
            nt, mt = m // 2, m % 2
            if m in need: g.lgwait(need[m])
            a = acc(mt, nt)
            c = "0" if n == 0 else f"v[{a}:{a+3}]"
            e(f"v_mfma_f32_16x16x32_bf16 v[{a}:{a+3}], v[{fA(n,mt)}:{fA(n,mt)+3}], v[{fB(n,nt)}:{fB(n,nt)+3}], {c}")
            if nxt: g.lgi(*nxt.pop(0))
            elif tr and n >= 2: g.lgi(*tr.pop(0))
            for _ in range(opt('cpm', 3)):
                if cl: e(cl.pop(0))
            if n % 2 == 1 and m == 6 and 3 <= n <= 13 and kk + 3 < opt('ldmax', 12): ld(kk+3)
            if n == 8 and m == 6 and sync: g.vmi("global_load_dword v229, v228, s[46:47] offset:64 sc1", "clean")
    g.lg0()
    if opt('g1st', 0):
        g.srd(72, 44, 2048*4096); g.stamp_flush(); return
    g.stamp()
    Pr = lambda ee, k: acc(k//2, ee) + 2*(k % 2)
    Pi = lambda ee, k: acc(k//2, 2+ee) + 2*(k % 2)
    cur = [(Pr(0, 0), Pi(0, 0)), (Pr(1, 0), Pi(1, 0))]
    for k in range(1, 4):
        nx = [(48 + 8*(k % 2) + 4*ee, 50 + 8*(k % 2) + 4*ee) for ee in range(2)]
        for ee in range(2):
            g.pk(nx[ee][0], cur[ee][0], lam2[ee], Pr(ee, k), 0)
            g.pk(nx[ee][1], cur[ee][0], lam2[ee], Pi(ee, k), 1)
        for ee in range(2):
            g.pk(nx[ee][0], cur[ee][1], lam2[ee], nx[ee][0], 1, neg=True)
            g.pk(nx[ee][1], cur[ee][1], lam2[ee], nx[ee][1], 0)
        cur = nx
    for ee in range(2):
        g.cmad(64+2*ee, 65+2*ee, cur[ee][0], cur[ee][1], lam[ee], lam[ee]+1, cur[ee][0]+1, cur[ee][1]+1)
    for ee in range(2): g.pmul(68+2*ee, 64+2*ee, wA[ee])
    e("ds_write_b128 v128, v[64:67]")
    g.gsum(68, 72)
    e(f"""s_mov_b64 exec, 0xffff
ds_write_b128 v130, v[68:71]
s_mov_b64 exec, -1
s_lshl_b32 s76, s7, 12
s_lshl_b32 s77, s6, 8
s_add_u32 s79, s76, s77
s_waitcnt lgkmcnt(0)
s_barrier
s_cmp_lg_u32 s34, 0
s_cbranch_scc1 L_A_nopub
ds_read_b128 v[68:71], v129
ds_read_b128 v[72:75], v129 offset:256
ds_read_b128 v[76:79], v129 offset:512
ds_read_b128 v[80:83], v129 offset:768""")
    if sync:
        g.vmwait("clean")
        e("v_cmp_ne_u32 vcc, 1, v229\ns_cbranch_vccz L_A_clean")
        g.clean_check(229, 228)
        e("L_A_clean:")
    e(f"""s_waitcnt lgkmcnt(0)
v_pk_add_f32 v[68:69], v[68:69], v[72:73]
v_pk_add_f32 v[70:71], v[70:71], v[74:75]
v_pk_add_f32 v[76:77], v[76:77], v[80:81]
v_pk_add_f32 v[78:79], v[78:79], v[82:83]
v_pk_add_f32 v[68:69], v[68:69], v[76:77]
v_pk_add_f32 v[70:71], v[70:71], v[78:79]
v_min_u32 v68, -2, v68
v_min_u32 v69, -2, v69
v_min_u32 v70, -2, v70
v_min_u32 v71, -2, v71
s_mov_b64 exec, 0xffff
buffer_store_dwordx4 v[68:71], v131, s[68:71], s79 offen sc1
s_mov_b64 exec, -1
L_A_nopub:""")
    ld(10); ld(11)
    g.stamp()
    HLr = lambda ee, i: 96 + 16*ee + i
    HLi = lambda ee, i: 104 + 16*ee + i
    for ee in range(2):
        for k in range(4):
            g.pkm(HLr(ee, 2*k), Pr(ee, k), cf[ee], 0); g.pkm(HLi(ee, 2*k), Pr(ee, k), cf[ee], 1)
            g.pk(HLr(ee, 2*k), Pi(ee, k), cf[ee], HLr(ee, 2*k), 1, neg=True)
            g.pk(HLi(ee, 2*k), Pi(ee, k), cf[ee], HLi(ee, 2*k), 0)
    e("""v_mov_b32 v64, 0
v_mov_b32 v65, 0
v_mov_b32 v66, 0
v_mov_b32 v67, 0
s_mov_b32 s77, s34
s_cmp_eq_u32 s77, 0
s_cbranch_scc1 L_A_pf2
L_A_pf1:
ds_read_b128 v[68:71], v132
ds_read_b128 v[72:75], v132 offset:256
ds_read_b128 v[76:79], v132 offset:512
ds_read_b128 v[80:83], v132 offset:768
s_waitcnt lgkmcnt(0)
v_add_u32 v132, 1024, v132""")
    g.pmad2(68, 64, lam8); g.pmad2(72, 68, lam8); g.pmad2(76, 72, lam8); g.pmad2(80, 76, lam8)
    e("""v_mov_b32 v64, v80
v_mov_b32 v65, v81
v_mov_b32 v66, v82
v_mov_b32 v67, v83
s_sub_u32 s77, s77, 1
s_cmp_lg_u32 s77, 0
s_cbranch_scc1 L_A_pf1
L_A_pf2:
ds_read_b128 v[68:71], v132
ds_read_b128 v[72:75], v132 offset:256
ds_read_b128 v[76:79], v132 offset:512
s_waitcnt lgkmcnt(0)""")
    g.pmad2(68, 64, lam8); g.pmad2(72, 68, lam8); g.pmad2(76, 72, lam8)
    for st in range(3):
        e(f"v_cmp_eq_u32 vcc, {st+1}, v3")
        for k in range(4): e(f"v_cndmask_b32 v{64+k}, v{64+k}, v{68+4*st+k}, vcc")
    for ee in range(2): g.pmul(68+2*ee, 64+2*ee, cf[ee])
    for i in range(8):
        for ee in range(2):
            pr, pi_ = (68+2*ee, 69+2*ee) if i == 0 else (HLr(ee, i-1), HLi(ee, i-1))
            g.cmad(HLr(ee, i), HLi(ee, i), pr, pi_, lam[ee], lam[ee]+1, HLr(ee, i), HLi(ee, i))
    for mt in range(4):
        for h in range(2):
            x_, d_ = 240+2*mt+h, 248+2*mt+h
            a = 16 + 4*mt + 2*h
            e(f"""v_lshlrev_b32 v{a}, 16, v{x_}
v_and_b32 v{a+1}, 0xffff0000, v{x_}
v_lshlrev_b32 v32, 16, v{d_}
v_and_b32 v33, 0xffff0000, v{d_}
v_mul_f32 v{a}, v{a}, v32
v_mul_f32 v{a+1}, v{a+1}, v33
v_cvt_pk_bf16_f32 v32, v{a}, v{a+1}
v_lshlrev_b32 v{a}, 16, v32
v_and_b32 v{a+1}, 0xffff0000, v32""")
    e(f"""v_bfe_u32 v6, v2, 2, 1
v_lshlrev_b32 v6, 5, v6
v_lshl_add_u32 v6, v3, 3, v6
v_lshrrev_b32 v7, 3, v2
v_lshl_add_u32 v6, v7, 2, v6
v_and_b32 v7, 3, v2
v_add_u32 v6, v6, v7
v_lshlrev_b32 v6, 4, v6
v_lshlrev_b32 v228, 2, v1""")
    for m in range(4):
        e(f"""v_or_b32 v7, {m<<2}, v3
v_xor_b32 v7, v7, v2
v_lshlrev_b32 v7, 4, v7
v_lshl_add_u32 v{8+m}, v2, 10, v7
v_add_u32 v{12+m}, 0x10000, v{8+m}""")
    g.srd(72, 44, 2048*4096)
    e(f"""s_lshl_b32 s76, s6, 3
s_lshl_b32 s77, s34, 1
s_add_u32 s76, s76, s77
s_lshl_b32 s76, s76, 5
s_add_u32 s76, s76, s7
s_lshl_b32 s76, s76, 10
s_add_u32 s80, s76, {WS_H}
s_add_u32 s81, s80, 16384
s_lshl_b32 s79, s6, 10
s_lshl_b32 s76, s34, 4
s_add_u32 s76, s76, s7
s_lshl_b32 s76, s76, 2
s_add_u32 s79, s79, s76
s_add_u32 s79, s79, {WS_FH}
v_mov_b32 v72, 0
v_mov_b32 v73, 0
v_mov_b32 v74, 0
v_mov_b32 v75, 0
s_cmp_eq_u32 s6, 0
s_cbranch_scc1 L_A_nocarry
s_cmp_lg_u32 s34, 0
s_cbranch_scc1 L_A_cw
s_lshl_b32 s78, s7, 12
s_mov_b32 s77, 0x40000
L_A_cp:""")
    for qq in range(4):
        e(f"buffer_load_dwordx4 v[{144+4*qq}:{147+4*qq}], v{140+qq}, s[68:71], s78 offen sc1")
    e("v_mov_b32 v95, 0")
    for qq in range(4):
        r = 144 + 4*qq
        e(f"""v_add_u32 v94, {4*qq}, v3
v_cmp_gt_u32 vcc, s6, v94
s_waitcnt vmcnt({3-qq})
v_cndmask_b32 v{r}, 0, v{r}, vcc
v_cndmask_b32 v{r+1}, 0, v{r+1}, vcc
v_cndmask_b32 v{r+2}, 0, v{r+2}, vcc
v_cndmask_b32 v{r+3}, 0, v{r+3}, vcc
v_max3_u32 v95, v95, v{r}, v{r+1}
v_max3_u32 v95, v95, v{r+2}, v{r+3}""")
    if sync:
        e("""v_cmp_eq_u32 vcc, -1, v95
s_cbranch_vccz L_A_cpd
s_sleep 1
s_sub_u32 s77, s77, 1
s_cmp_lg_u32 s77, 0
s_cbranch_scc1 L_A_cp
L_A_cpd:""")
    g.pmad2(152, 156, L4); g.pmad2(148, 152, L4); g.pmad2(144, 148, L4); g.pmad2(72, 144, Lg)
    g.gsum(72, 80)
    e("""ds_write_b128 v133, v[72:75]
s_waitcnt lgkmcnt(0)
L_A_cw:
s_barrier
ds_read_b128 v[76:79], v133
s_waitcnt lgkmcnt(0)""")
    for ee in range(2): g.pmul(72+2*ee, 76+2*ee, wS[ee])
    g.stamp()
    for k in range(4):
        for ee in range(2):
            c_ = 72 + 2*ee
            g.pk(HLr(ee, 2*k), PWr(ee, 2*k), c_, HLr(ee, 2*k), 0)
            g.pk(HLi(ee, 2*k), PWr(ee, 2*k), c_, HLi(ee, 2*k), 1)
        for ee in range(2):
            c_ = 72 + 2*ee
            g.pk(HLr(ee, 2*k), PWi(ee, 2*k), c_, HLr(ee, 2*k), 1, neg=True)
            g.pk(HLi(ee, 2*k), PWi(ee, 2*k), c_, HLi(ee, 2*k), 0)
    e("L_A_nocarry:")
    R0 = 144; TT = 48
    for i in range(8):
        e(f"v_cvt_pk_bf16_f32 v{R0+i}, v{HLr(0,i)}, v{HLr(1,i)}")
        e(f"v_cvt_pk_bf16_f32 v{R0+8+i}, -v{HLi(0,i)}, -v{HLi(1,i)}")
    def tstage(d, sh, mhi, mlo):
        prs = [(R0+4*k+r, R0+4*k+r+d) for k in range(4) for r in range(4) if not (r & d)]
        for n_, (lo, hi) in enumerate(prs): e(f"v_mov_b32 v{TT+n_}, v{lo}")
        for n_, (lo, hi) in enumerate(prs): e(f"v_mov_b32_dpp v{lo}, v{hi} row_shr:{sh} row_mask:0xf bank_mask:{mhi}")
        for n_, (lo, hi) in enumerate(prs): e(f"v_mov_b32_dpp v{hi}, v{TT+n_} row_shl:{sh} row_mask:0xf bank_mask:{mlo}")
    tstage(1, 4, "0xa", "0x5")
    tstage(2, 8, "0xc", "0x3")
    for part in range(2):
        for half in range(2):
            r = R0 + 8*part + 4*half
            e(f"buffer_store_dwordx4 v[{r}:{r+3}], v134, s[68:71], s{80+part} offen offset:{512*half} sc1")
    e(f"""s_lshl_b32 s78, s82, 3
s_add_u32 s78, s78, s3
s_lshl_b32 s81, s82, 10
s_add_u32 s81, s81, {WS_FH}
s_lshl_b32 s78, s78, 15
s_add_u32 s78, s78, {WS_H}
s_lshr_b32 s80, s83, 1""")
    if sync:
        e("v_cmp_ne_u32 vcc, 1, v229\ns_cbranch_vccz L_A_clean2\nv_lshlrev_b32 v230, 2, v2")
        g.clean_check(229, 230)
        e("L_A_clean2:")
    g.flag_set(135, "s79")
    g.stamp()
    e("s_and_b32 s79, s83, 1\ns_lshl_b32 s79, s79, 14")
    if sync:
        e("s_cmp_lg_u32 s3, 0\ns_cbranch_scc1 L_A_np")
        g.flag_poll(7, 228, "s81")
        e("L_A_np:")
    e("s_barrier")
    g.stamp()
    g.vm = []; g.lg = []
    def hld(s_):
        if s_ % 4 == 0:
            s4_ = s_ // 4
            e(f"""s_add_u32 s76, s80, {s4_}
s_and_b32 s76, s76, 3
s_lshl_b32 s76, s76, 12
s_xor_b32 s77, s79, {(s4_ >> 2) << 14}
s_add_u32 s76, s76, s77
s_add_u32 s76, s76, s78""")
        r = 96 + 4*s_
        g.vmi(f"buffer_load_dwordx4 v[{r}:{r+3}], v6, s[68:71], s76 offen offset:{1024*(s_%4)} sc1", f"H{s_}")
    def crd(s_, mt):
        part, sp = s_ // 16, s_ % 16
        r = 32 + 16*(s_ % 4) + 4*mt
        g.lgi(f"ds_read_b128 v[{r}:{r+3}], v{8+4*part+(sp&3)} offset:{mt*16384 + (sp>>2)*256}", f"C{s_}_{mt}")
    NH = opt('nh', 10)
    for s_ in range(NH): hld(s_)
    for s_ in range(2):
        for mt in range(4): crd(s_, mt)
    for s_ in range(32):
        g.vmwait(f"H{s_}")
        for mt in range(4):
            g.lgwait(f"C{s_}_{mt}")
            r = 32 + 16*(s_ % 4) + 4*mt; a = 16 + 4*mt
            e(f"v_mfma_f32_16x16x32_bf16 v[{a}:{a+3}], v[{r}:{r+3}], v[{96+4*s_}:{99+4*s_}], v[{a}:{a+3}]")
            if s_ + 2 < 32: crd(s_+2, mt)
        if s_ + NH < 32: hld(s_ + NH)
    g.stamp()
    e("""s_lshl_b32 s78, s82, 19
s_lshl_b32 s76, s3, 16
s_add_u32 s78, s78, s76
s_lshl_b32 s76, s83, 8
s_add_u32 s78, s78, s76
v_lshlrev_b32 v6, 4, v3
v_lshl_add_u32 v6, v2, 12, v6""")
    for mt in range(4):
        a = 16 + 4*mt
        e(f"buffer_store_dwordx4 v[{a}:{a+3}], v6, s[72:75], s78 offen offset:{64*mt} {OPT.get('ost', '')}")
    if g.stamps:
        e("s_waitcnt vmcnt(0)"); g.stamp()
    g.stamp_flush()
```

```python
from gen3 import *
L_K = 0; KSTR = 4176; L_U = 33408; USTR = 4608; L_STG = 51840; L_PX = 88704; L_Y = 113280
def roleB(g):
    e = g; sync = g.sync; pmul = g.pmul
    e("""s_lshr_b32 s6, s3, 1
s_and_b32 s7, s3, 1
s_lshl_b32 s51, s4, 6
s_lshl_b32 s76, s5, 2
s_add_u32 s51, s51, s76
s_add_u32 s50, s51, s6
v_lshlrev_b32 v6, 4, v1
v_mov_b32 v16, 0
s_lshl_b32 s76, s50, 8
s_lshl_b32 s77, s7, 7
s_add_u32 s76, s76, s77
v_lshl_add_u32 v8, v1, 1, s76
s_lshl_b32 s76, s50, 1
v_mov_b32 v9, s76
s_lshl_b32 s76, s5, 5
v_add_u32 v7, s76, v0
v_and_b32 v7, 0x1ff, v7          ; tau'
v_lshlrev_b32 v10, 12, v7
s_lshl_b32 s78, s51, 1
s_waitcnt lgkmcnt(0)""")
    g.srd(52, 26, 2048*1024)
    e("""global_load_ushort v20, v8, s[28:29]
global_load_ushort v21, v8, s[30:31]
global_load_ushort v22, v8, s[32:33]
global_load_ushort v23, v8, s[34:35]
global_load_ushort v24, v8, s[36:37]
global_load_ushort v25, v8, s[38:39]
global_load_ushort v26, v9, s[40:41]
global_load_ushort v27, v9, s[42:43]""")
    g.srd(68, 48, 0x1000000)
    g.srd(72, 44, 2048*4096)
    if sync:
        e(f"""s_cmp_lg_u32 s3, 7
s_cbranch_scc1 L_B_noclean
s_cmp_ge_u32 s2, {128+NCLEAN}
s_cbranch_scc1 L_B_noclean
v_mov_b32 v12, -1
v_mov_b32 v13, -1
v_mov_b32 v14, -1
v_mov_b32 v15, -1
s_sub_u32 s77, s2, 128
s_mul_i32 s76, s77, {WS_SYNC_END//NCLEAN}""")
        for k in range(WS_SYNC_END // NCLEAN // 1024):
            e(f"buffer_store_dwordx4 v[12:15], v6, s[68:71], s76 offen sc1\ns_add_u32 s76, s76, 1024")
        e("""s_lshl_b32 s76, s77, 2
v_mov_b32 v11, s76
s_waitcnt vmcnt(0)
s_mov_b64 exec, 1
global_store_dword v11, v5, s[46:47] offset:64 sc1
s_mov_b64 exec, -1
L_B_noclean:""")
    e("""s_cmp_lg_u32 s3, 6
s_cbranch_scc1 L_B_nopf
s_getpc_b64 s[76:77]
L_B_pc:
s_sub_u32 s76, s76, L_B_pc-%s
s_subb_u32 s77, s77, 0
s_and_b32 s79, s5, 7
s_lshl_b32 s79, s79, 12
v_lshl_add_u32 v11, v1, 6, s79
global_load_dword v12, v11, s[76:77]
L_B_nopf:
s_barrier""" % g.K)
    def touch1():
        e("""s_lshr_b32 s76, s4, 1
s_lshl_b32 s76, s76, 19
s_lshl_b32 s77, s5, 15
s_add_u32 s76, s76, s77
s_lshl_b32 s77, s3, 13
s_add_u32 s76, s76, s77
s_and_b32 s77, s4, 1
s_lshl_b32 s77, s77, 18
s_lshl_b32 s79, s5, 14
s_add_u32 s77, s77, s79
s_and_b32 s79, s3, 1
s_lshl_b32 s79, s79, 13
s_add_u32 s77, s77, s79
s_cmp_ge_u32 s3, 4
s_cselect_b32 s76, s77, s76
s_cselect_b32 s80, s14, s8
s_cselect_b32 s81, s15, s9
s_cmp_ge_u32 s3, 6
s_cselect_b32 s80, s16, s80
s_cselect_b32 s81, s17, s81
v_lshl_add_u32 v210, v1, 7, s76
global_load_dword v211, v210, s[80:81]""")
    def touchC():
        e("""s_lshl_b32 s76, s5, 14
s_and_b32 s77, s3, 3
s_lshl_b32 s77, s77, 12
s_add_u32 s76, s76, s77
s_and_b32 s77, s4, 1
s_lshl_b32 s77, s77, 18
s_add_u32 s76, s76, s77
s_cmp_ge_u32 s3, 4
s_cselect_b32 s80, s20, s18
s_cselect_b32 s81, s21, s19
v_and_b32 v212, 31, v1
v_lshl_add_u32 v212, v212, 7, s76
global_load_dword v213, v212, s[80:81]""")
    def uld(k):
        e(f"buffer_load_dwordx2 v[{200+2*k}:{201+2*k}], v214, s[52:55], s83 offen offset:{1024*k}")
    e("v_mov_b32 v214, v10\ns_mov_b32 s83, s78")
    tm = opt('touch', 1)
    slow = {0: [lambda: uld(0), lambda: uld(1), lambda: uld(2), lambda: uld(3)],
            1: [touch1, lambda: uld(0), touchC, lambda: uld(1), lambda: uld(2), lambda: uld(3)],
            2: [lambda: uld(0), touchC, lambda: uld(1), lambda: uld(2), lambda: uld(3)]}[tm]
    def slow1():
        if slow: slow.pop(0)()
    slow1()
    e("s_waitcnt vmcnt(1)")
    g.stamp()
    ZR, ZI, DT, T0, T1 = 28, 29, 30, 31, 32
    for r in range(20, 28): e(f"v_lshlrev_b32 v{r}, 16, v{r}")
    g.exp_bf16(DT, 26, T0, T1)
    e(f"""v_mul_f32 v{ZR}, v{DT}, v20
v_mul_f32 v{ZI}, v{DT}, v21
v_mul_f32 v{ZR}, {f32(L2E)}, v{ZR}
v_mul_f32 v{ZI}, {f32(INV2PI)}, v{ZI}
v_mul_f32 v22, v{DT}, v22
v_mul_f32 v23, v{DT}, v23""")
    E = lambda c: 34 + 2*c
    E128 = 52
    H = lambda a: 54 + 2*a
    pmul(H(0), 24, 22)
    g.cexp(E(1), E(1)+1, ZR, ZI, "1.0", T0, T1)
    g.cexp(E(8), E(8)+1, ZR, ZI, f32(8.0), T0, T1)
    g.cexp(E128, E128+1, ZR, ZI, f32(128.0), T0, T1)
    e(f"""s_mul_i32 s76, s3, 4608
s_add_u32 s76, s76, {L_STG}
v_lshl_add_u32 v8, v1, 2, s76
v_mul_u32_u24 v9, 288, v2
v_lshl_add_u32 v9, v3, 4, v9
v_add_u32 v9, s76, v9""")
    LO = 96; HF = lambda T: 112 + 16*(T % 2)
    D = lambda T: 144 + 4*T
    X0, X1, PK = 88, 90, 92
    def rd(dst):
        for ks in range(4): e(f"ds_read_b128 v[{dst+4*ks}:{dst+4*ks+3}], v9 offset:{64*ks}")
    pk = [0]
    def put(row, x, conj):
        p = PK + (pk[0] % 4); pk[0] += 1
        e(f"v_cvt_pk_bf16_f32 v{p}, v{x}, {'-' if conj else ''}v{x+1}")
        e(f"ds_write_b32 v8, v{p} offset:{row*288}")
    slow1()
    e(f"v_mov_b32 v{PK+3}, 0x3f80\nds_write_b32 v8, v{PK+3}")
    put(1, E(8), False)
    cur = E(8)
    for b in range(2, 16):
        nx = X0 if b % 2 == 0 else X1
        pmul(nx, cur, E(8)); cur = nx
        if b < 8: pmul(E(b), E(b-1), E(1))
        pmul(H(b-1), H(b-2), E128)
        put(b, cur, False)
        if b == 9: slow1()
    rd(LO)
    for a in range(15, 17): pmul(H(a), H(a-1), E128)
    xx = [0]
    def hrow(row, a, c):
        if c == 0: put(row, H(a), True)
        else:
            x = X0 if xx[0] % 2 == 0 else X1; xx[0] += 1
            pmul(x, H(a), E(c)); put(row, x, True)
    tiles = [
        [(r // 8, r % 8) for r in range(16)],
        [[(2 + g_//2, 4*(g_%2)), (2 + g_//2, 4*(g_%2)+2), (4+g_, 0), (4+g_, 4)][r] for g_ in range(4) for r in range(4)],
        [[(8+g_, 0), (12+g_, 0), (16, 0) if g_ == 0 else None, None][r] for g_ in range(4) for r in range(4)],
    ]
    def mm(T):
        for ks in range(4):
            c = "0" if ks == 0 else f"v[{D(T)}:{D(T)+3}]"
            e(f"v_mfma_f32_16x16x32_bf16 v[{D(T)}:{D(T)+3}], v[{HF(T)+4*ks}:{HF(T)+4*ks+3}], v[{LO+4*ks}:{LO+4*ks+3}], {c}")
    for T in range(3):
        slow1()
        for row in range(16):
            if tiles[T][row] is not None: hrow(row, *tiles[T][row])
        if T > 0:
            e("s_waitcnt lgkmcnt(9)" if T == 2 else "s_waitcnt lgkmcnt(15)")
            mm(T-1)
        rd(HF(T))
    e(f"""s_xor_b32 s76, s3, 1
s_mul_i32 s76, s76, 3072
s_add_u32 s76, s76, {L_PX}
v_add_u32 v10, s76, v6
s_mul_i32 s76, s3, 3072
s_add_u32 s76, s76, {L_PX}
v_add_u32 v11, s76, v6
s_mul_i32 s78, s3, {KSTR}
s_add_u32 s78, s78, {L_K+16}
s_lshl_b32 s76, s7, 1
s_sub_u32 s79, s78, s76              ; base_c
v_lshlrev_b32 v12, 4, v2
v_lshrrev_b32 v13, 1, v3
v_lshlrev_b32 v13, 8, v13
v_and_b32 v14, 1, v3
v_lshl_add_u32 v13, v14, 3, v13
v_add_u32 v13, v13, v12
s_add_u32 s76, s79, {4094 - 516}
v_sub_u32 v13, s76, v13              ; F1'
v_lshl_add_u32 v14, v3, 8, v12
s_add_u32 s76, s79, {4094 - 3080}
v_sub_u32 v14, s76, v14              ; F2'
v_and_b32 v12, 1, v2
v_lshlrev_b32 v12, 1, v12
v_add_u32 v15, v14, v12              ; F2p
v_sub_u32 v18, v14, v12              ; F2m
v_lshl_add_u32 v12, v1, 2, s78
v_mov_b32 v19, s79
s_waitcnt lgkmcnt(0)""")
    mm(2)
    e("""s_mov_b64 exec, 0x1ffff
ds_write_b32 v12, v16 offset:4092
s_mov_b64 exec, -1""")
    for T in range(3): e(f"ds_write_b128 v10, v[{D(T)}:{D(T)+3}] offset:{1024*T}")
    g.stamp()
    e("s_waitcnt lgkmcnt(0)\ns_barrier")
    for T in range(3): e(f"ds_read_b128 v[{96+4*T}:{99+4*T}], v11 offset:{1024*T}")
    e("s_waitcnt lgkmcnt(0)")
    for k in range(6): e(f"v_pk_add_f32 v[{144+2*k}:{145+2*k}], v[{144+2*k}:{145+2*k}], v[{96+2*k}:{97+2*k}]")
    for T in range(3):
        e(f"v_cvt_pk_bf16_f32 v{96+2*T}, v{D(T)}, v{D(T)+1}\nv_cvt_pk_bf16_f32 v{97+2*T}, v{D(T)+2}, v{D(T)+3}")
    e("s_mov_b64 exec, 1")
    for k in range(4): e(f"ds_write_b16 v19, v101 offset:{2*k}")
    e("s_mov_b64 exec, -1")
    def w16(T, r, addr, off):
        reg = 96 + 2*T + r//2
        e(f"ds_write_b16{'_d16_hi' if r % 2 else ''} v{addr}, v{reg} offset:{off}")
    for r, ex in ((1, 1536), (0, 1024)):
        for dl in range(-4, 5):
            w16(2, r, {4: 15, -4: 18}.get(dl, 14), 2*(1540 - (ex+dl)))
    for dl in range(-2, 3): w16(1, 2, 14, 2*(1540 - (512+dl)))
    for dl in range(-1, 2): w16(1, 3, 14, 2*(1540 - (516+dl)))
    for dl in range(-1, 2): w16(1, 0, 13, 2*(258 - (256+dl)))
    w16(1, 1, 13, 0)
    for r in range(4): w16(0, r, 13, 2*(258 - r))
    g.stamp()
    e(f"""s_mul_i32 s80, s6, {USTR}
s_add_u32 s80, s80, {L_U}
v_add_u32 v13, s80, v6
v_mov_b32 v104, 0
v_mov_b32 v105, 0
v_mov_b32 v106, 0
v_mov_b32 v107, 0
s_mov_b32 exec_hi, 0
ds_write_b128 v13, v[104:107]
s_mov_b64 exec, -1
v_lshlrev_b32 v12, 3, v7
v_add_u32 v12, {L_U + 512}, v12
s_mov_b32 s76, 0x05040100
s_mov_b32 s77, 0x07060302
s_waitcnt vmcnt(0)""")
    for ch in range(4):
        sel = "s76" if ch % 2 == 0 else "s77"; o = ch // 2
        e(f"""v_perm_b32 v{108+2*ch}, v{202+o}, v{200+o}, {sel}
v_perm_b32 v{109+2*ch}, v{206+o}, v{204+o}, {sel}
ds_write_b64 v12, v[{108+2*ch}:{109+2*ch}] offset:{ch*USTR}""")
    e(f"""s_lshl_b32 s76, s6, 1
s_mul_i32 s76, s76, {KSTR}
s_add_u32 s76, s76, {L_K + 16 + 2*2031 - 448 - 512}
v_and_b32 v12, 1, v2
v_xor_b32 v12, 1, v12
v_mul_u32_u24 v13, {KSTR - 2}, v12
v_lshl_add_u32 v13, v3, 4, v13
v_lshlrev_b32 v12, 1, v2
v_sub_u32 v13, v13, v12
v_add_u32 v8, s76, v13
v_add_u32 v9, -1024, v8
v_add_u32 v10, -2048, v8
v_add_u32 v11, -3072, v8
v_lshlrev_b32 v12, 5, v2
v_lshl_add_u32 v12, v3, 4, v12
s_add_u32 s76, s80, {480 - 448}
v_add_u32 v14, s76, v12
v_lshlrev_b32 v12, 5, v2
v_lshl_add_u32 v12, v3, 3, v12
s_add_u32 s76, s80, 512
v_add_u32 v15, s76, v12
s_lshl_b32 s76, s6, 12
s_add_u32 s76, s76, {L_Y}
v_add_u32 v17, s76, v12
s_waitcnt lgkmcnt(0)
s_barrier""")
    g.stamp()
    e("s_cmp_lg_u32 s7, 0\ns_cbranch_scc1 L_B_conv1")
    ACC = lambda k: 32 + 4*k
    def conv(tl):
        nf = max(tl) + 1
        AF = lambda st, jj: 64 + 64*st + 4*jj
        BF = lambda st, kk: 96 + 64*st + 4*kk
        def reads(mu0):
            st = mu0 % 2; ops = []
            for jj in range(nf):
                o = (7 - mu0)*16 + (128 if jj % 2 == 0 else 0)
                r = AF(st, jj)
                ops.append(f"ds_read2_b32 v[{r}:{r+1}], v{8 + jj//2} offset0:{o} offset1:{o+1}")
                ops.append(f"ds_read2_b32 v[{r+2}:{r+3}], v{8 + jj//2} offset0:{o+2} offset1:{o+3}")
                r = BF(st, jj)
                ops.append(f"ds_read_b128 v[{r}:{r+3}], v14 offset:{512*jj + 64*(7-mu0)}")
            return ops
        for op in reads(0): e(op)
        for mu0 in range(8):
            st = mu0 % 2
            e("s_waitcnt lgkmcnt(0)")
            nxt = reads(mu0+1) if mu0 < 7 else [f"ds_read_b64 v[{48+2*k}:{49+2*k}], v15 offset:{512*t}" for k, t in enumerate(tl)]
            mf = []
            for jj in range(nf):
                for k, t in enumerate(tl):
                    if jj <= t:
                        a = ACC(k)
                        c = "0" if (mu0 == 0 and jj == 0) else f"v[{a}:{a+3}]"
                        mf.append(f"v_mfma_f32_16x16x32_bf16 v[{a}:{a+3}], v[{AF(st,jj)}:{AF(st,jj)+3}], v[{BF(st,t-jj)}:{BF(st,t-jj)+3}], {c}")
            for n_, m in enumerate(mf):
                e(m)
                for _ in range(2):
                    if nxt: e(nxt.pop(0))
            for op in nxt: e(op)
    conv([6, 7, 0, 1])
    e("v_add_u32 v18, 3072, v17\ns_branch L_B_conv2\nL_B_conv1:")
    conv([4, 5, 2, 3])
    e("v_add_u32 v18, 2048, v17\nv_add_u32 v17, 1024, v17\nL_B_conv2:")
    e("s_nop 7\ns_waitcnt lgkmcnt(0)")
    g.stamp()
    for k in range(4):
        for h in range(2):
            a = ACC(k) + 2*h; u_ = 48 + 2*k + h; t = 80 + 4*h
            e(f"""v_cvt_pk_bf16_f32 v{t}, v{a}, v{a+1}
v_lshlrev_b32 v{t+1}, 16, v{u_}
v_and_b32 v{t+2}, 0xffff0000, v{u_}
v_mul_f32 v{t+1}, v{t+1}, v27
v_mul_f32 v{t+2}, v{t+2}, v27
v_cvt_pk_bf16_f32 v{t+1}, v{t+1}, v{t+2}
v_lshlrev_b32 v{t+2}, 16, v{t}
v_and_b32 v{t}, 0xffff0000, v{t}
v_lshlrev_b32 v{t+3}, 16, v{t+1}
v_and_b32 v{t+1}, 0xffff0000, v{t+1}
v_add_f32 v{t+2}, v{t+2}, v{t+3}
v_add_f32 v{t}, v{t}, v{t+1}
v_cvt_pk_bf16_f32 v{64+2*k+h}, v{t+2}, v{t}""")
        e(f"ds_write_b64 v{18 if k < 2 else 17}, v[{64+2*k}:{65+2*k}] offset:{512*(k%2)}")
    e(f"""v_lshlrev_b32 v12, 3, v7
v_add_u32 v12, {L_Y}, v12
v_lshlrev_b32 v13, 14, v7
s_lshl_b32 s82, s51, 2
s_add_u32 s82, s82, 2048
s_waitcnt lgkmcnt(0)
s_barrier""")
    g.stamp()
    for ch in range(4): e(f"ds_read_b64 v[{96+2*ch}:{97+2*ch}], v12 offset:{4096*ch}")
    e("s_waitcnt lgkmcnt(0)")
    for k in range(4):
        for ch in range(4):
            src = 96 + 2*ch + k//2
            e(f"v_lshlrev_b32 v{112+4*k+ch}, 16, v{src}" if k % 2 == 0 else f"v_and_b32 v{112+4*k+ch}, 0xffff0000, v{src}")
        e(f"buffer_store_dwordx4 v[{112+4*k}:{115+4*k}], v13, s[72:75], s82 offen {OPT.get('ost', '')}")
        if k < 3: e("s_add_u32 s82, s82, 4096")
    if g.stamps:
        e("s_waitcnt vmcnt(0)"); g.stamp()
    g.stamp_flush()
```

```python
import sys, os
import gen2
from gen2 import G, f32, NAME, L2E, INV2PI, opt, OPT
WS_AGG = 0; WS_FH = 65536; WS_SYNC_END = 81920
WS_H = 0x100000; WS_ST = 0x900000
NCLEAN = 16
L_SEG = 131072
L_SUM4 = 139264
L_CAR = 141312
L_CNT = 141824
L_TAB = 141888; L_PW = L_TAB + 24*512
LDS_TOTAL = 163840
gen2.L_CNT = L_CNT

def gen(sync=True, stamps=0, nlaunch=1, doA=True, doB=True):
    from gen3A import roleA
    from gen3B import roleB
    g = G(sync, stamps)
    K = NAME + "_kernel"; g.K = K
    out = open("cdna_kernels/" + NAME + ".s.ref").read().split("; Override launch")[0]
    if nlaunch == 1: out += f"; @launch grid=(256,1,1) block=(512,1,1) lds={LDS_TOTAL}\n"
    else: out += f"; @launch kernel={K} grid=(256,1,1) block=(512,1,1) lds={LDS_TOTAL}\n" * nlaunch
    out += f""".amdgcn_target "amdgcn-amd-amdhsa--gfx950"
.text
.globl {K}
.p2align 8
.type {K},@function
{K}:
"""
    g.stamp()
    g(f"""s_cmp_ge_u32 s2, 256
s_cbranch_scc1 L_end
s_load_dwordx8 s[40:47], s[0:1], 128
s_load_dwordx2 s[48:49], s[0:1], 160
s_load_dwordx16 s[8:23], s[0:1], 0
s_load_dwordx16 s[24:39], s[0:1], 64
v_and_b32 v0, 0x3ff, v0
v_and_b32 v1, 63, v0
v_lshrrev_b32 v6, 6, v0
v_and_b32 v2, 15, v0
v_readfirstlane_b32 s3, v6
v_bfe_u32 v3, v0, 4, 2
v_mov_b32 v4, {L_CNT}
v_mov_b32 v5, 1
s_and_b32 s4, s2, 7
s_bfe_u32 s5, s2, 0x40003
s_cmp_ge_u32 s2, 128
s_cbranch_scc1 L_roleB""")
    n0 = g.nst
    if doA: roleA(g)
    g("s_endpgm\nL_roleB:")
    g.nst = n0; g.vm = []; g.lg = []
    if doB: roleB(g)
    g("L_end:\ns_endpgm")
    out += g.e.text()
    out += f".fill (33024 - (. - {K}))/4, 4, 0xbf800000\n"
    out += f""".section .rodata,"a"
.p2align 6
.amdhsa_kernel {K}
  .amdhsa_next_free_vgpr 256
  .amdhsa_next_free_sgpr 102
  .amdhsa_accum_offset 256
  .amdhsa_group_segment_fixed_size 0
  .amdhsa_kernarg_size 168
  .amdhsa_user_sgpr_count 2
  .amdhsa_user_sgpr_kernarg_segment_ptr 1
  .amdhsa_system_sgpr_workgroup_id_x 1
.end_amdhsa_kernel
"""
    return out

if __name__ == "__main__":
    import argparse
    ap = argparse.ArgumentParser()
    ap.add_argument("out")
    ap.add_argument("--nosync", action="store_true")
    ap.add_argument("--stamps", type=int, default=0)
    ap.add_argument("--nlaunch", type=int, default=1)
    ap.add_argument("--noA", action="store_true")
    ap.add_argument("--noB", action="store_true")
    a = ap.parse_args()
    open(a.out, "w").write(gen(not a.nosync, a.stamps, a.nlaunch, not a.noA, not a.noB))
```
